```python
import torch

def _softmax(x, axis=-1):
    return torch.softmax(x, dim=axis)
def _gelu(x):
    return torch.nn.functional.gelu(x, approximate="tanh")
def _silu(x):
    return torch.nn.functional.silu(x)
def _sigmoid(x):
    return torch.sigmoid(x)
def _layernorm(x, axis=-1, eps=1e-5):
    m = x.mean(dim=axis, keepdim=True)
    v = x.var(dim=axis, keepdim=True, unbiased=False)
    return (x - m) / torch.sqrt(v + eps)
def _scatter_add(tgt, idx, src, axis=0):
    return tgt.clone().index_add_(axis, idx, src)
def _segment_sum(src, seg, n):
    out = torch.zeros((n,) + src.shape[1:], dtype=src.dtype)
    return out.index_add_(0, seg, src)
def _pad(x, pw):
    flat = tuple(v for pair in reversed(pw) for v in pair)
    return torch.nn.functional.pad(x, flat)

kernel_name = 'gather_scatter__edge_featured_mpnn_mpnn__graph'

def setup_inputs():

    _w = (lambda a: (lambda t: t.to(torch.bfloat16) if t.is_floating_point() else t)(torch.as_tensor(a)))
    N, deg, D, De = 10000, 64, 64, max(0, 1)
    E = N * deg
    H = 2 * D
    return {
        "x": _w((lambda *s: torch.randn(*s, dtype=torch.bfloat16) * 0.05)(N, D)),
        "e_attr": _w((lambda *s: torch.randn(*s, dtype=torch.bfloat16) * 1.6)(E, De)),
        "src": _w((lambda lo, hi, *s: torch.randint(lo, hi, s))(0, N, E).to(torch.int64)),
        "dst": _w((lambda lo, hi, *s: torch.randint(lo, hi, s))(0, N, E).to(torch.int64)),
        "w1": _w((lambda *s: torch.randn(*s, dtype=torch.bfloat16) * 1.6)(2 * D + De, H) * (1.0 / (2 * D + De) ** 0.5)),
        "b1": _w((lambda *s: torch.randn(*s, dtype=torch.bfloat16) * 3.2)(H) * 0.01),
        "w2": _w((lambda *s: torch.randn(*s, dtype=torch.bfloat16) * 0.05)(H, D) * (1.0 / H ** 0.5)),
        "b2": _w((lambda *s: torch.randn(*s, dtype=torch.bfloat16) * 0.1)(D) * 0.01),
    }

def reference(x, e_attr, src, dst, w1, b1, w2, b2):
    N, D = x.shape
    h_src = x[src]
    h_dst = x[dst]
    m_in = torch.concatenate([h_src, h_dst, e_attr], axis=-1)
    h = _silu(m_in @ w1 + b1)
    msg = h @ w2 + b2
    return _segment_sum(msg, dst, N)
```

```python
import re
REG = re.compile(r'^(-|\|)?([vas])(\d+)\|?$|^(-)?([vas])\[(\d+):(\d+)\]$')
def regs_of(op):
    op = op.strip()
    if op in ('vcc',): return [('s','vcc')]
    if op in ('vcc_lo','vcc_hi'): return [('s','vcc')]
    if op == 'exec': return [('s','exec')]
    if op == 'm0': return [('s','m0')]
    m = REG.match(op)
    if not m: return []
    if m.group(2): return [(m.group(2), int(m.group(3)))]
    return [(m.group(5), i) for i in range(int(m.group(6)), int(m.group(7))+1)]
TRANS = ('v_exp_f32','v_rcp_f32','v_log_f32','v_rsq_f32','v_sqrt_f32')
class Ins:
    def __init__(s, text):
        s.text = text
        t = text.split(';')[0].strip()
        s.label = t.endswith(':')
        s.empty = (t == '') or t.startswith('.')
        if s.label or s.empty:
            s.mn=''; s.dst=[]; s.src=[]; s.kind='none'; s.ws=0; return
        parts = t.split(None,1)
        mn = parts[0]; s.mn = mn
        rest = parts[1] if len(parts)>1 else ''
        ops=[]; cur=''; depth=0
        for ch in rest:
            if ch=='[': depth+=1
            if ch==']': depth-=1
            if ch==',' and depth==0: ops.append(cur.strip()); cur=''
            else: cur+=ch
        if cur.strip(): ops.append(cur.strip())
        mods=''
        if ops:
            l=ops[-1].split(None,1)
            ops[-1]=l[0]
            if len(l)>1: mods=l[1]
        s.mods=mods; s.ops=ops
        R=[regs_of(o) for o in ops]
        flat=lambda L:[r for x in L for r in x]
        s.ws=1
        s.dpp = ('row_' in mods) or ('dpp' in mn) or ('quad_perm' in mods)
        s.trans = any(mn.startswith(x) for x in TRANS)
        s.lds_dma=False; s.srcC=[]; s.passes=0; s.widestore=[]
        if mn.startswith('v_mfma'):
            s.kind='mfma'; s.dst=R[0]; s.src=flat(R[1:]); s.srcC=R[3]; s.srcAB=R[1]+R[2]
            s.passes = 8 if '32x32x16' in mn else 4
        elif mn.startswith('v_'):
            s.kind='valu'; s.dst=R[0]; s.src=flat(R[1:])
            if mn.startswith('v_fmac'): s.src=s.src+R[0]
            if mn.startswith('v_cndmask') and len(ops)==3: s.src.append(('s','vcc'))
        elif mn.startswith('ds_'):
            s.kind='ds'
            if 'read' in mn or 'rtn' in mn or 'permute' in mn: s.dst=R[0]; s.src=flat(R[1:])
            else: s.dst=[]; s.src=flat(R)
        elif mn.startswith('buffer_') or mn.startswith('global_'):
            s.kind='vmem'
            if re.search(r'\blds\b', mods): s.lds_dma=True; s.dst=[]; s.src=flat(R)+[('s','m0')]
            elif 'load' in mn: s.dst=R[0]; s.src=flat(R[1:])
            else:
                s.dst=[]; s.src=flat(R)
                if 'x4' in mn or 'x3' in mn: s.widestore=R[0]
        elif mn.startswith('s_'):
            s.kind='salu'
            if mn=='s_nop': s.ws=int(ops[0])+1; s.dst=[]; s.src=[]
            elif mn.startswith(('s_cmp','s_waitcnt','s_branch','s_cbranch','s_barrier','s_endpgm','s_setprio','s_bitcmp')): s.dst=[]; s.src=flat(R)
            else:
                s.dst=R[0] if R else []; s.src=flat(R[1:])
                if 'saveexec' in mn: s.dst=s.dst+[('s','exec')]
        else:
            raise Exception('unknown '+text)
def need(p, c):
    n=0
    pd=set(p.dst); cs=set(c.src); cd=set(c.dst)
    if p.kind=='valu':
        vd={r for r in pd if r[0] in 'va'}; sd={r for r in pd if r[0]=='s'}
        if c.kind=='mfma' and vd & cs: n=max(n,2)
        if c.kind=='valu' and c.dpp and vd & cs: n=max(n,2)
        if c.kind=='valu' and c.mn.startswith(('v_readlane','v_readfirstlane')) and vd & cs: n=max(n,1)
        if p.trans and c.kind=='valu' and not c.trans and vd & cs: n=max(n,1)
        if p.trans and c.kind in('ds','vmem') and vd & cs: n=max(n,1)
        if sd:
            if c.kind=='valu' and sd & cs: n=max(n, 4 if c.mn.startswith(('v_readlane','v_writelane')) else 2)
            if c.kind=='vmem' and sd & cs: n=max(n,5)
            if c.kind=='salu' and sd & cs: n=max(n,1)
    if p.kind=='mfma':
        big = 12 if p.passes==8 else 8
        if c.kind in('valu','ds','vmem') and (pd & cs or pd & cd): n=max(n,big)
        if c.kind=='mfma':
            if pd & set(c.srcAB): n=max(n,big)
            if pd & set(c.srcC):
                if not (c.srcC==p.dst and c.passes==p.passes): n=max(n, big-2)
            elif pd & cd: n=max(n,big)
        if c.kind=='valu' and set(p.srcC) & cd: n=max(n, 7 if p.passes==8 else 3)
    if p.kind=='salu' and ('s','m0') in pd and c.kind=='vmem' and c.lds_dma: n=max(n,1)
    if p.kind=='vmem' and p.widestore and set(p.widestore) & cd: n=max(n,2)
    return n
def fix(lines, check_only=False, name=''):
    out=[]; hist=[]
    pos=0; added=0
    for l in lines:
        c=Ins(l)
        if c.kind=='none': out.append(l); continue
        req=0
        for p,pp in hist:
            d=pos-pp-1
            r=need(p,c)-d
            if r>req: req=r; why=p.text
        if req>0:
            if check_only: raise Exception(f'hazard {name}: {why} -> {l} needs {req}')
            added+=1
            k=req
            while k>0:
                m=min(k,16); out.append(f'  s_nop {m-1}'); k-=m
            pos+=req
        out.append(l)
        hist.append((c,pos+c.ws-1)); pos+=c.ws
        hist=[(p,pp) for p,pp in hist if pos-pp<24]
    return out
```

```python
from asmlib import *
WS_REC=0; WS_OFF=0x500000; WS_W1A=0x580000; WS_W1B=0x584000; WS_W2=0x588000; WS_SIZE=0x590000
LOG2E_BITS=0x3FB8AA3B
def srd(L, d, b, size):
    L += [f"  s_mov_b32 s{d}, s{b}", f"  s_mov_b32 s{d+1}, s{b+1}", f"  s_mov_b32 s{d+2}, {size}", f"  s_mov_b32 s{d+3}, 0x00020000"]
def scan64(L, v):
    for sh in (1,2,4,8):
        L.append(f"  v_add_u32_dpp v{v}, v{v}, v{v} row_shr:{sh} row_mask:0xf bank_mask:0xf bound_ctrl:0")
    L.append(f"  v_add_u32_dpp v{v}, v{v}, v{v} row_bcast:15 row_mask:0xa bank_mask:0xf")
    L.append(f"  v_add_u32_dpp v{v}, v{v}, v{v} row_bcast:31 row_mask:0xc bank_mask:0xf")
K1_STAGE=2560
K1_LDS=K1_STAGE+20000
def kernel1():
    L=[]
    A=L.append
    A("part_kernel:")
    A("  s_cmp_ge_u32 s2, 262")
    A("  s_cbranch_scc1 P_EXIT")
    A("  s_cmp_ge_u32 s2, 256")
    A("  s_cbranch_scc1 P_PREP")
    A("  s_load_dwordx4 s[4:7], s[0:1], 8")
    A("  s_load_dwordx2 s[8:9], s[0:1], 24")
    A("  s_load_dwordx2 s[10:11], s[0:1], 80")
    A("  v_lshlrev_b32 v1, 2, v0")
    A("  v_mov_b32 v2, 0")
    A("  ds_write_b32 v1, v2")
    A("  v_lshlrev_b32 v1, 4, v0")
    A("  v_lshlrev_b32 v3, 3, v0")
    A("  s_mul_i32 s3, s2, 10000")
    A("  s_mul_i32 s28, s2, 5000")
    A("  s_mul_i32 s29, s2, 20000")
    A("  s_add_u32 s30, s29, 10000")
    A("  s_mov_b32 s31, 214749")
    A("  s_mov_b32 s32, 0xffff0000")
    A("  v_mov_b32 v2, 1")
    A("  v_cmp_gt_u32 vcc, 625, v0")
    A("  s_and_saveexec_b64 s[34:35], vcc")
    A("  s_waitcnt lgkmcnt(0)")
    srd(L,16,8,2560000)
    A("  buffer_load_dwordx4 v[8:11], v1, s[16:19], s3 offen")
    srd(L,12,6,2560000)
    A("  buffer_load_dwordx4 v[4:7], v1, s[12:15], s3 offen")
    srd(L,20,4,1280000)
    A("  buffer_load_dwordx2 v[12:13], v3, s[20:23], s28 offen")
    srd(L,24,10,WS_SIZE)
    A("  s_barrier")
    A("  s_waitcnt vmcnt(2)")
    for i in range(4):
        A(f"  v_mul_u32_u24 v{14+i}, s31, v{8+i}")
    for i in range(4):
        A(f"  v_lshrrev_b32 v{14+i}, 21, v{14+i}")
    for i in range(4):
        A(f"  v_and_b32 v{14+i}, 0x3fc, v{14+i}")
        A(f"  ds_add_rtn_u32 v{18+i}, v{14+i}, v2")
    A("  s_waitcnt vmcnt(0)")
    A("  v_lshl_or_b32 v4, v12, 16, v4")
    A("  v_and_or_b32 v5, v12, s32, v5")
    A("  v_lshl_or_b32 v6, v13, 16, v6")
    A("  v_and_or_b32 v7, v13, s32, v7")
    A("  s_waitcnt lgkmcnt(0)")
    A("  s_barrier")
    A("  v_cmp_gt_u32 vcc, 64, v0")
    A("  s_cbranch_vccz P_NOSCAN")
    A("  ds_read_b128 v[24:27], v1")
    A("  s_lshl_b32 s33, s2, 10")
    A(f"  s_add_u32 s33, s33, {WS_OFF}")
    A("  s_waitcnt lgkmcnt(0)")
    A("  v_add_u32 v29, v24, v25")
    A("  v_add_u32 v30, v29, v26")
    A("  v_add_u32 v31, v30, v27")
    A("  v_mov_b32 v28, v31")
    scan64(L,28)
    A("  v_sub_u32 v32, v28, v31")
    A("  v_add_u32 v33, v32, v24")
    A("  v_add_u32 v34, v32, v29")
    A("  v_add_u32 v35, v32, v30")
    A(f"  v_mov_b32 v40, {K1_STAGE}")
    for i in range(4):
        A(f"  v_lshl_add_u32 v{36+i}, v{32+i}, 3, v40")
    A("  ds_write_b128 v1, v[36:39] offset:1024")
    for i in range(4):
        A(f"  v_lshl_or_b32 v{32+i}, v{24+i}, 16, v{32+i}")
    A("  buffer_store_dwordx4 v[32:35], v1, s[24:27], s33 offen")
    A("  s_waitcnt lgkmcnt(0)")
    A("P_NOSCAN:")
    A("  s_barrier")
    for i in range(4):
        A(f"  ds_read_b32 v{14+i}, v{14+i} offset:1024")
    for i in range(4):
        A(f"  s_waitcnt lgkmcnt({3-i})")
        A(f"  v_lshl_add_u32 v{14+i}, v{18+i}, 3, v{14+i}")
    for i in range(4):
        A(f"  ds_write2_b32 v{14+i}, v{4+i}, v{8+i} offset0:0 offset1:1")
    A("  s_waitcnt lgkmcnt(0)")
    A("  s_barrier")
    A(f"  ds_read_b128 v[4:7], v1 offset:{K1_STAGE}")
    A(f"  ds_read_b128 v[8:11], v1 offset:{K1_STAGE+10000}")
    A("  s_waitcnt lgkmcnt(1)")
    A("  buffer_store_dwordx4 v[4:7], v1, s[24:27], s29 offen")
    A("  s_waitcnt lgkmcnt(0)")
    A("  buffer_store_dwordx4 v[8:11], v1, s[24:27], s30 offen")
    A("P_EXIT:")
    A("  s_endpgm")
    A("P_PREP:")
    A("  s_load_dwordx2 s[4:5], s[0:1], 32")
    A("  s_load_dwordx2 s[6:7], s[0:1], 48")
    A("  s_load_dwordx2 s[10:11], s[0:1], 80")
    A("  v_cmp_gt_u32 vcc, 512, v0")
    A("  s_cbranch_vccz P_EXIT")
    A("  s_sub_u32 s3, s2, 256")
    A("  s_and_b32 s28, s3, 1")
    A("  s_lshl_b32 s28, s28, 9")
    A("  v_add_u32 v1, s28, v0")
    A("  s_lshr_b32 s29, s3, 1")
    A("  s_lshl_b32 s30, s29, 14")
    A(f"  s_add_u32 s30, s30, {WS_W1A}")
    A("  s_mov_b32 s31, 1.0")
    A("  s_cmp_eq_u32 s29, 0")
    A(f"  s_cselect_b32 s31, {LOG2E_BITS}, s31")
    A("  s_waitcnt lgkmcnt(0)")
    srd(L,24,10,WS_SIZE)
    srd(L,12,4,129*256)
    srd(L,16,6,128*128)
    A("  s_cmp_eq_u32 s29, 2")
    A("  s_cbranch_scc1 P_PREP2")
    A("  v_bfe_u32 v2, v1, 5, 1")
    A("  v_bfe_u32 v3, v1, 6, 2")
    A("  v_lshlrev_b32 v2, 13, v2")
    A("  v_lshl_add_u32 v2, v3, 11, v2")
    A("  v_lshrrev_b32 v3, 8, v1")
    A("  v_lshl_add_u32 v2, v3, 6, v2")
    A("  v_and_b32 v3, 31, v1")
    A("  v_lshl_add_u32 v2, v3, 1, v2")
    A("  s_lshl_b32 s32, s29, 14")
    for j in range(8):
        A(f"  buffer_load_ushort v{8+j}, v2, s[12:15], s32 offen offset:{256*j}")
    A("  s_branch P_PREP3")
    A("P_PREP2:")
    A("  v_bfe_u32 v2, v1, 4, 2")
    A("  v_bfe_u32 v3, v1, 6, 2")
    A("  v_lshlrev_b32 v2, 10, v2")
    A("  v_lshl_add_u32 v2, v3, 12, v2")
    A("  v_lshrrev_b32 v3, 8, v1")
    A("  v_lshl_add_u32 v2, v3, 5, v2")
    A("  v_and_b32 v3, 15, v1")
    A("  v_lshl_add_u32 v2, v3, 1, v2")
    for j in range(8):
        A(f"  buffer_load_ushort v{8+j}, v2, s[16:19], 0 offen offset:{128*j}")
    A("P_PREP3:")
    A("  v_lshlrev_b32 v1, 4, v1")
    A("  s_waitcnt vmcnt(0)")
    for j in range(8):
        A(f"  v_lshlrev_b32 v{8+j}, 16, v{8+j}")
    for j in range(8):
        A(f"  v_mul_f32 v{8+j}, s31, v{8+j}")
    for j in range(4):
        A(f"  v_cvt_pk_bf16_f32 v{4+j}, v{8+2*j}, v{9+2*j}")
    A("  buffer_store_dwordx4 v[4:7], v1, s[24:27], s30 offen")
    A("  s_endpgm")
    return fix(L)
```

```python
from asmlib import *
from k1 import *
XB=0; BD=65536; RS=528; S_=BD+41*RS; DEG=S_+41*RS; OVF=DEG+256; CNT=OVF+16; MORE=CNT+256; GB=MORE+16
SORT=(GB+256+127)//128*128; NT_MAX=292; DESC=SORT+NT_MAX*128; K2_LDS=DESC+NT_MAX*16
Z0=BD+40*RS; Z0N=CNT-Z0
XA=4; SW=8; OH=10; L4=12; P128=13; P32=14; PD=15; CHK=16; N_=18; DN=20; AA=22; R_=24; AD=[26,28]
REC=32; A5=[36,40]; B5=[44,48,52,56]; D=[60,76]; T=92; B2=108; NV=112
W=0; X=[64,80]; W2=96; NA=128
sX=4; sWS=8; sW1=12; sOUT=16; sB1=20; sB2=24
sN0=28; sNN=29; sWV=30; sRB=31; sMODE=32; sNT=33; sCNT=34; sMORE=35; s128=36; sM0=[37,38]; sTH=39
sMK=52
def q4(p,r): return f"{p}[{r}:{r+3}]"
def v2(r): return f"v[{r}:{r+1}]"
def pk(op,d,a,b,c=None):
    f=lambda r: r if isinstance(r,str) else v2(r)
    if c is None: return f"  v_pk_{op}_f32 {f(d)}, {f(a)}, {f(b)}"
    return f"  v_pk_{op}_f32 {f(d)}, {f(a)}, {f(b)}, {f(c)}"
class DSQ:
    def __init__(s): s.q=[]
    def issue(s,tag): s.q.append(tag)
    def wait(s,*tags):
        idx=-1
        for i,t in enumerate(s.q):
            if t in tags: idx=i
        if idx<0: return []
        n=len(s.q)-1-idx
        n=min(n,15)
        s.q=s.q[len(s.q)-n:] if n>0 else []
        return [f"  s_waitcnt lgkmcnt({n})"]
def chain(Dc):
    ins=[pk('add',AA,T,"1.0")+" op_sel_hi:[1,0]", pk('fma',N_,Dc,T+2,Dc), pk('fma',DN,AA,T+2,AA), pk('fma',N_,Dc+2,AA,N_)]
    for j in range(2,8):
        ins+=[pk('fma',AA,Dc+2*j,DN,N_), pk('fma',DN,DN,T+2*j,DN), pk('fma',N_,N_,T+2*j,AA)]
    return ins
def chain_safe(Dc):
    ins=[]
    for j in range(8): ins.append(pk('add',T+2*j,T+2*j,"1.0")+" op_sel_hi:[1,0]")
    for i in range(16): ins.append(f"  v_rcp_f32 v{T+i}, v{T+i}")
    ins.append(pk('mul',N_,Dc,T))
    for j in range(1,8): ins.append(pk('fma',N_,Dc+2*j,T+2*j,N_))
    return ins
def mfmas(Dn_,tn,pp):
    ms=[f"  v_mfma_f32_32x32x16_bf16 v[{Dn_}:{Dn_+15}], {q4('v',A5[pp])}, {q4('v',B5[tn])}, 0"]
    for s in range(4):
        ms.append(f"  v_mfma_f32_32x32x16_bf16 v[{Dn_}:{Dn_+15}], {q4('a',X[pp]+4*s)}, {q4('a',W+16*tn+4*s)}, v[{Dn_}:{Dn_+15}]")
    return ms
def bd_reads(Q,tt,ap):
    Q.issue(f'b5_{tt}'); Q.issue(f'b5_{tt}')
    return [f"  ds_read_b32 v{B5[tt]+1}, v{AD[ap]} offset:{128*tt}", f"  ds_read_b32 v{B5[tt]+2}, v{AD[ap]+1} offset:{128*tt}"]
def adds(Q,tt,ap,src):
    Q.issue('add'); Q.issue('add')
    o=S_-BD+128*tt
    return [f"  ds_add_f32 v{AD[ap]}, v{src} offset:{o}", f"  ds_add_f32 v{AD[ap]+1}, v{src+1} offset:{o}"]
def dma(buf):
    out=[]
    for s in range(4):
        out.append(f"  s_mov_b32 m0, s{sM0[buf]}" if s==0 else "  s_add_u32 m0, m0, 1024")
        out.append(f"  v_mad_u32_u16 v{REC+s}, v{REC+s}, s{s128}, v{SW+(s&1)}")
        out.append(f"  buffer_load_dwordx4 v{REC+s}, s[{sX}:{sX+3}], 0 offen lds")
    return out
def a5mask(pp):
    return [f"  v_cmp_le_i16 vcc, 0, v{A5[pp]}", None, None,
            f"  v_cndmask_b32 v{A5[pp]+1}, 0, v{OH}, vcc", f"  v_cndmask_b32 v{A5[pp]+2}, 0, v{OH+1}, vcc"]
def tile(Q,p,safe):
    q=1-p; out=[]
    for t in range(4):
        Dc=D[t&1]; Dn_=D[(t+1)&1]; tn=(t+1)%4; pp=p if t<3 else q
        tr=[f"  v_exp_f32_e64 v{T+i}, -v{Dc+i}" for i in range(16)]
        if not safe: tr+=[f"  v_rcp_f32 v{R_}, v{DN}", f"  v_rcp_f32 v{R_+1}, v{DN+1}"]
        else: tr+=["  s_nop 0","  s_nop 0"]
        ms=mfmas(Dn_,tn,pp)
        side={}
        def at(pos,f): side.setdefault(pos,[]).append(f)
        def xr(s):
            def f():
                Q.issue(f'x'); return [f"  ds_read_b128 {q4('a',X[q]+4*s)}, v{XA+s} offset:{4096*q}"]
            return f
        if t==0:
            at(2,lambda: bd_reads(Q,2,p))
            at(3,lambda: ["  s_waitcnt vmcnt(4)"])
            at(3,xr(0)); at(5,xr(1)); at(6,xr(2)); at(8,xr(3))
            def f():
                Q.issue('rec'); return [f"  ds_read_b128 {q4('v',REC)}, v{P128} offset:{(3+p)*1024}"]
            at(9,f)
            def f():
                Q.issue('a5'); return [f"  ds_read_b32 v{A5[q]}, v{P32} offset:{(1+p)*1024}"]
            at(11,f)
        if t==1:
            at(2,lambda: bd_reads(Q,3,p))
            d=dma(q)
            at(3,lambda: Q.wait('rec','x')+d[0:3])
            at(5,lambda: d[3:6]); at(6,lambda: d[6:9]); at(8,lambda: d[9:12])
            m=a5mask(q)
            at(9,lambda: Q.wait('a5')+[m[0]])
            at(11,lambda: Q.wait('desc')+[f"  v_add_u32 v{AD[q]}, v{AD[q]}, v{L4}", f"  v_add_u32 v{AD[q]+1}, v{AD[q]+1}, v{L4}"])
            at(12,lambda: [m[3],m[4]])
        if t==2: at(2,lambda: bd_reads(Q,0,q))
        if t==3:
            at(2,lambda: bd_reads(Q,1,q))
            if p==1:
                at(5,lambda: [f"  v_add_u32 v{P128}, 2048, v{P128}", f"  v_add_u32 v{P32}, 2048, v{P32}", f"  v_add_u32 v{PD}, 256, v{PD}"])
        k=0
        for i,x in enumerate(tr):
            if k<5 and i==1+3*k:
                if k==0: out+=Q.wait(f'b5_{tn}')
                if k==1 and t==3: out+=Q.wait('x')
                out.append(ms[k]); k+=1
            for f in side.get(i,[]): out+=f()
            out.append(x)
        ap = q if t==0 else p
        tprev=(t+3)%4
        if not safe:
            out.append(pk('add',CHK,CHK,DN))
            out.append(pk('mul',R_,N_,R_))
            out+=adds(Q,tprev,ap,R_)
        else:
            out+=adds(Q,tprev,ap,N_)
        if t==0:
            Q.issue('desc'); out.append(f"  ds_read_b64 {v2(AD[q])}, v{PD} offset:{(1+p)*128}")
        out+= chain_safe(Dc) if safe else chain(Dc)
    return out
def finish(p,safe):
    Q=DSQ()
    if safe: return adds(Q,3,p,N_)
    return [f"  v_rcp_f32 v{R_}, v{DN}", f"  v_rcp_f32 v{R_+1}, v{DN+1}", pk('add',CHK,CHK,DN), pk('mul',R_,N_,R_)]+adds(Q,3,p,R_)
def mainloop(safe):
    tag='S' if safe else 'F'
    Q=DSQ()
    tile(Q,0,safe); tile(Q,1,safe)
    b0=tile(Q,0,safe); b1=tile(Q,1,safe)
    L=[".p2align 6", f"M_LOOP{tag}:"]+b0
    L+=[f"  s_sub_u32 s{sCNT}, s{sCNT}, 1", f"  s_cmp_eq_u32 s{sCNT}, 0", f"  s_cbranch_scc1 M_FIN0{tag}"]
    L+=b1
    L+=[f"  s_sub_u32 s{sCNT}, s{sCNT}, 1", f"  s_cmp_lg_u32 s{sCNT}, 0", f"  s_cbranch_scc1 M_LOOP{tag}"]
    L=fix(L)
    fix(L+L, check_only=True, name='loop'+tag)
    L+=finish(1,safe)+["  s_branch M_DONE", f"M_FIN0{tag}:"]+finish(0,safe)+["  s_branch M_DONE"]
    return L
def fill(L, base, nbytes, quad, tmp=2):
    n=nbytes//16; full=n//512; rem=n%512
    L.append(f"  v_add_u32 v{tmp}, {base}, v3")
    for i in range(full): L.append(f"  ds_write_b128 v{tmp}, {q4('v',quad)} offset:{8192*i}")
    if rem:
        L.append(f"  v_cmp_gt_u32 vcc, {rem}, v0")
        L.append(f"  s_mov_b64 exec, vcc")
        L.append(f"  ds_write_b128 v{tmp}, {q4('v',quad)} offset:{8192*full}")
        L.append(f"  s_mov_b64 exec, -1")
RC=D[0]; RK=T; OFS=18; REM=22; VOF=26
def round_head(L, first):
    A=L.append
    A(f"  v_lshrrev_b32 v2, 3, v0")
    A(f"  v_lshlrev_b32 v30, 10, v2")
    A(f"  s_lshl_b32 s40, s2, 2")
    A(f"  s_add_u32 s40, s40, {WS_OFF}")
    for j in range(4):
        A(f"  buffer_load_dword v{OFS+j}, v30, s[{sWS}:{sWS+3}], s40 offen")
        if j<3: A(f"  s_add_u32 s40, s40, 65536")
    if first:
        A(f"  v_and_b32 v31, 31, v1")
        A(f"  v_lshrrev_b32 v17, 5, v1")
        A(f"  v_lshlrev_b32 v30, 7, v31")
        A(f"  v_lshl_add_u32 v30, v17, 6, v30")
        A(f"  s_lshr_b32 s41, s{sWV}, 2")
        A(f"  s_lshl_b32 s42, s41, 5")
        A(f"  s_add_u32 s42, s42, s{sN0}")
        A(f"  s_lshl_b32 s42, s42, 7")
        for s in range(4): A(f"  buffer_load_dwordx4 {q4('a',X[0]+4*s)}, v30, s[{sX}:{sX+3}], s42 offen offset:{16*s}")
        A(f"  v_lshlrev_b32 v30, 4, v1")
        A(f"  s_and_b32 s43, s{sWV}, 3")
        A(f"  s_lshl_b32 s44, s43, 12")
        A(f"  s_add_u32 s44, s44, {WS_W1B}")
        for s in range(4): A(f"  buffer_load_dwordx4 {q4('a',X[1]+4*s)}, v30, s[{sWS}:{sWS+3}], s44 offen offset:{1024*s}")
        A(f"  v_lshlrev_b32 v31, 1, v31")
        A(f"  s_lshl_b32 s44, s43, 6")
        A(f"  buffer_load_ushort v{REC}, v31, s[{sB1}:{sB1+3}], s44 offen")
        A(f"  s_mov_b32 s44, {128*256}")
        for t in range(4): A(f"  buffer_load_ushort v{B5[t]}, v31, s[{sW1}:{sW1+3}], s44 offen offset:{64*t}")
    A(f"  v_lshlrev_b32 v3, 4, v0")
    for i in range(4): A(f"  v_mov_b32 v{T+i}, 0")
    for i in range(4): A(f"  v_mov_b32 v{T+4+i}, 0x8000")
    for i in range(4): A(f"  v_mov_b32 v{T+8+i}, {40*RS}")
    if first: fill(L, Z0, Z0N+272, T)
    else: fill(L, CNT, 272, T)
    fill(L, SORT, NT_MAX*128, T+4)
    fill(L, DESC, NT_MAX*16, T+8)
    A(f"  v_lshrrev_b32 v2, 3, v0")
    A(f"  v_mul_u32_u24 v30, 20000, v2")
    A(f"  v_and_b32 v2, 7, v0")
    A(f"  v_lshl_add_u32 v30, v2, 4, v30")
    A(f"  v_lshlrev_b32 v2, 1, v2")
    A(f"  v_add_u32 v2, s{sRB}, v2")
    A(f"  s_lshl_b32 s40, s{sRB}, 3")
    for j in range(4):
        A(f"  s_waitcnt vmcnt({(13 if first else 0)+3-j})")
        A(f"  v_and_b32 v{VOF+j}, 0xffff, v{OFS+j}")
        A(f"  v_lshrrev_b32 v{REM+j}, 16, v{OFS+j}")
        A(f"  v_lshl_add_u32 v{VOF+j}, v{VOF+j}, 3, v30")
        A(f"  v_sub_u32 v{REM+j}, v{REM+j}, v2")
        for u in range(2):
            for i in range(2):
                k=sMK+2*(4*j+2*u+i)
                A(f"  v_cmp_lt_i32_e64 s[{k}:{k+1}], {16*u+i}, v{REM+j}")
    A(f"  v_mov_b32 v2, 0x40000000")
    for j in range(4):
        for u in range(2):
            k=sMK+2*(4*j+2*u)
            A(f"  v_cndmask_b32_e64 v{30+u}, v2, v{VOF+j}, s[{k}:{k+1}]")
            A(f"  buffer_load_dwordx4 {q4('v',RC+8*j+4*u)}, v{30+u}, s[{sWS}:{sWS+3}], s40 offen offset:{128*u}")
        if j<3: A(f"  s_add_u32 s40, s40, {64*20000}")
    if first:
        A(f"  v_lshlrev_b32 v30, 4, v1")
        A(f"  s_mov_b32 s40, {WS_W1A}")
        for t in range(4):
            for s in range(4): A(f"  buffer_load_dwordx4 {q4('a',W+16*t+4*s)}, v30, s[{sWS}:{sWS+3}], s40 offen offset:{1024*s}")
            if t<3: A(f"  s_add_u32 s40, s40, 4096")
        A(f"  s_and_b32 s40, s{sWV}, 1")
        A(f"  s_lshl_b32 s45, s40, 6")
        A(f"  s_lshl_b32 s40, s40, 13")
        A(f"  s_add_u32 s40, s40, {WS_W2}")
        for cc in range(2):
            for s in range(4): A(f"  buffer_load_dwordx4 {q4('a',W2+16*cc+4*s)}, v30, s[{sWS}:{sWS+3}], s40 offen offset:{1024*s}")
            if cc<1: A(f"  s_add_u32 s40, s40, 4096")
        A(f"  v_lshrrev_b32 v30, 4, v1")
        A(f"  v_lshlrev_b32 v30, 3, v30")
        for cc in range(2): A(f"  buffer_load_dwordx2 {v2(B2+2*cc)}, v30, s[{sB2}:{sB2+3}], s45 offen offset:{32*cc}")
        A(f"  s_waitcnt vmcnt({8+26})")
        for s in range(4):
            c = "0" if s==0 else f"v[{T}:{T+15}]"
            A(f"  v_mfma_f32_32x32x16_bf16 v[{T}:{T+15}], {q4('a',X[0]+4*s)}, {q4('a',X[1]+4*s)}, {c}")
        A(f"  s_mov_b32 s46, {LOG2E_BITS}")
        A(f"  v_cmp_lt_u32 vcc, 31, v1")
        for t in range(4):
            r=B5[t]
            A(f"  v_lshlrev_b32 v{r}, 16, v{r}")
            A(f"  v_mul_f32 v{r}, s46, v{r}")
            A(f"  v_cvt_pk_bf16_f32 v{r+1}, 0, v{r}")
            A(f"  v_sub_f32 v{r}, v{r}, v{r+1}")
            A(f"  v_cvt_pk_bf16_f32 v{r}, 0, v{r}")
            A(f"  v_cndmask_b32 v{r}, v{r+1}, v{r}, vcc")
            A(f"  v_mov_b32 v{r+3}, 0")
        A(f"  v_lshlrev_b32 v{REC}, 16, v{REC}")
        A(f"  v_mul_f32 v{REC}, s46, v{REC}")
        A(f"  s_mul_i32 s47, s41, {32*RS}")
        A(f"  s_lshl_b32 s44, s43, 7")
        A(f"  s_add_u32 s47, s47, s44")
        A(f"  v_mul_u32_u24 v30, {4*RS}, v17")
        A(f"  v_add3_u32 v30, v30, v{L4}, s47")
        for r in range(16):
            if r==4:
                A(f"  s_cmp_eq_u32 s41, 1")
                A(f"  s_cbranch_scc1 M_BDONE")
            A(f"  v_fma_f32 v{T+r}, v{T+r}, s46, v{REC}")
            A(f"  v_cvt_pk_bf16_f32 v{REC+1}, 0, v{T+r}")
            A(f"  v_sub_f32 v{REC+1}, v{T+r}, v{REC+1}")
            A(f"  v_cvt_pk_bf16_f32 v{T+r}, v{REC+1}, v{T+r}")
            A(f"  ds_write_b32 v30, v{T+r} offset:{(8*(r>>2)+(r&3))*RS}")
        A("M_BDONE:")
    else:
        A(f"  s_waitcnt vmcnt(0)")
def kernel2():
    L=[]; A=L.append
    A("main_kernel:")
    A("  s_cmp_ge_u32 s2, 256")
    A("  s_cbranch_scc1 M_EXIT")
    A("  s_load_dwordx2 s[48:49], s[0:1], 80")
    A("  s_load_dwordx2 s[50:51], s[0:1], 0")
    A("  s_load_dwordx4 s[40:43], s[0:1], 32")
    A("  s_load_dwordx4 s[44:47], s[0:1], 56")
    A("  v_and_b32 v1, 63, v0")
    A("  v_lshrrev_b32 v2, 6, v0")
    A(f"  v_readfirstlane_b32 s{sWV}, v2")
    A(f"  s_mul_i32 s{sN0}, s2, 625")
    A(f"  s_add_u32 s{sNN}, s{sN0}, 640")
    A(f"  s_add_u32 s{sN0}, s{sN0}, 15")
    A(f"  s_lshr_b32 s{sN0}, s{sN0}, 4")
    A(f"  s_lshr_b32 s{sNN}, s{sNN}, 4")
    A(f"  s_sub_u32 s{sNN}, s{sNN}, s{sN0}")
    A(f"  s_mov_b32 s{sRB}, 0")
    A(f"  s_mov_b32 s{sMODE}, 0")
    A(f"  s_mov_b32 s{s128}, 128")
    A(f"  s_mov_b32 s{sTH}, 0x5f800000")
    A(f"  s_lshl_b32 s{sM0[0]}, s{sWV}, 13")
    A(f"  s_add_u32 s{sM0[1]}, s{sM0[0]}, 4096")
    A(f"  v_and_b32 v2, 31, v1")
    A(f"  v_lshlrev_b32 v{L4}, 2, v2")
    A(f"  v_add_u32 v{L4}, {BD}, v{L4}")
    A("  s_waitcnt lgkmcnt(0)")
    srd(L,sWS,48,WS_SIZE); srd(L,sX,50,1280000); srd(L,sW1,40,129*256); srd(L,sB1,42,256); srd(L,sB2,44,128); srd(L,sOUT,46,1280000)
    round_head(L,True)
    A(f"  v_and_b32 v2, 31, v1")
    A(f"  v_and_b32 v30, 28, v2")
    A(f"  v_bfe_u32 v31, v2, 1, 1")
    A(f"  v_and_b32 v17, 1, v2")
    A(f"  v_lshl_or_b32 v31, v17, 1, v31")
    A(f"  v_or_b32 v30, v30, v31")
    A(f"  v_bfe_u32 v31, v30, 1, 3")
    A(f"  v_lshlrev_b32 v30, 7, v30")
    A(f"  v_add_u32 v30, s{sM0[0]}, v30")
    A(f"  v_lshrrev_b32 v3, 5, v1")
    A(f"  v_lshlrev_b32 v{REC+2}, 2, v3")
    A(f"  v_xor_b32 v31, v31, v{REC+2}")
    for s in range(4):
        A(f"  v_xor_b32 v{XA+s}, {s}, v31")
        A(f"  v_lshl_add_u32 v{XA+s}, v{XA+s}, 4, v30")
    A(f"  v_bfe_u32 v30, v2, 2, 1")
    A(f"  v_lshl_or_b32 v30, v30, 1, v17")
    A(f"  v_lshlrev_b32 v31, 1, v3")
    A(f"  v_mov_b32 v{REC+2}, 0x3f803f80")
    A(f"  v_cmp_eq_u32 vcc, v30, v31")
    A(f"  v_cndmask_b32 v{OH}, 0, v{REC+2}, vcc")
    A(f"  v_add_u32 v31, 1, v31")
    A(f"  v_cmp_eq_u32 vcc, v30, v31")
    A(f"  v_cndmask_b32 v{OH+1}, 0, v{REC+2}, vcc")
    A(f"  v_lshrrev_b32 v31, 4, v1")
    A(f"  v_and_b32 v{REC+2}, 7, v1")
    A(f"  v_xor_b32 v31, v31, v{REC+2}")
    A(f"  v_lshlrev_b32 v{SW}, 4, v31")
    A(f"  v_xor_b32 v{SW+1}, 64, v{SW}")
    A(f"  v_mov_b32 v{A5[0]+3}, 0")
    A(f"  v_mov_b32 v{A5[1]+3}, 0")
    A("M_COUNT:")
    A("  s_waitcnt lgkmcnt(0)")
    A("  s_barrier")
    A(f"  s_lshl_b32 s40, s{sN0}, 2")
    A(f"  s_sub_u32 s40, {CNT}, s40")
    A(f"  v_mov_b32 v2, 1")
    A(f"  v_max_i32 v30, v{REM}, v{REM+1}")
    A(f"  v_max3_i32 v30, v30, v{REM+2}, v{REM+3}")
    A(f"  v_mov_b32 v31, {MORE}")
    A(f"  v_cmp_lt_i32 vcc, 32, v30")
    A(f"  s_mov_b64 exec, vcc")
    A(f"  ds_write_b32 v31, v2")
    A(f"  s_mov_b64 exec, -1")
    for j in range(4):
        for u in range(2):
            A(f"  s_waitcnt vmcnt({26+7-(2*j+u)})")
            for i in range(2):
                k=4*j+2*u+i; r=RC+8*j+4*u+2*i
                A(f"  s_mov_b64 exec, s[{sMK+2*k}:{sMK+2*k+1}]")
                A(f"  v_lshl_add_u32 v{r+1}, v{r+1}, 2, s40")
                A(f"  ds_add_rtn_u32 v{RK+k}, v{r+1}, v2")
    A(f"  s_mov_b64 exec, -1")
    A(f"  s_lshl_b32 s41, s{sWV}, 7")
    A(f"  s_add_u32 s41, s41, {SORT}")
    A(f"  v_lshrrev_b32 v30, 3, v1")
    A(f"  v_lshl_add_u32 v{P128}, v30, 4, s41")
    A(f"  v_bfe_u32 v30, v1, 3, 2")
    A(f"  v_bfe_u32 v31, v1, 1, 1")
    A(f"  v_lshl_or_b32 v30, v31, 2, v30")
    A(f"  v_and_b32 v31, 1, v1")
    A(f"  v_lshl_or_b32 v30, v31, 3, v30")
    A(f"  v_bfe_u32 v31, v1, 2, 1")
    A(f"  v_lshl_or_b32 v30, v31, 4, v30")
    A(f"  v_lshl_add_u32 v{P32}, v30, 2, s41")
    A(f"  s_lshl_b32 s41, s{sWV}, 4")
    A(f"  s_add_u32 s41, s41, {DESC}")
    A(f"  v_lshrrev_b32 v30, 5, v1")
    A(f"  v_lshl_add_u32 v{PD}, v30, 3, s41")
    A(f"  v_lshlrev_b32 v3, 2, v1")
    A(f"  v_add_u32 v3, {CNT}, v3")
    A("  s_waitcnt lgkmcnt(0)")
    A("  s_barrier")
    A(f"  ds_read_b32 v17, v3")
    A(f"  v_mov_b32 v31, {MORE}")
    A(f"  ds_read_b32 v31, v31")
    A("  s_waitcnt lgkmcnt(1)")
    A(f"  v_add_u32 v30, 7, v17")
    A(f"  v_lshrrev_b32 v30, 3, v30")
    A(f"  v_mov_b32 v2, v30")
    scan64(L,2)
    A(f"  v_readlane_b32 s{sNT}, v2, 63")
    A(f"  v_sub_u32 v2, v2, v30")
    A(f"  v_mov_b32 v{REC}, {SORT}")
    A(f"  v_lshl_add_u32 v{REC}, v2, 5, v{REC}")
    A(f"  ds_write_b32 v3, v{REC} offset:{GB-CNT}")
    A("  s_waitcnt lgkmcnt(0)")
    A(f"  v_readfirstlane_b32 s{sMORE}, v31")
    for k in range(16):
        r=RC+2*k
        A(f"  s_mov_b64 exec, s[{sMK+2*k}:{sMK+2*k+1}]")
        A(f"  ds_read_b32 v{r+1}, v{r+1} offset:{GB-CNT}")
    A(f"  s_mov_b64 exec, -1")
    A(f"  v_add_u32 v{REC}, s{sWV}, v2")
    A(f"  v_lshlrev_b32 v{REC}, 2, v{REC}")
    A(f"  v_add_u32 v{REC}, {DESC}, v{REC}")
    A(f"  v_mul_u32_u24 v{REC+1}, {RS}, v1")
    A(f"  v_subrev_u32 v30, s{sWV}, v30")
    A("M_DESC:")
    A(f"  v_cmp_lt_i32 vcc, 0, v30")
    A(f"  s_cbranch_vccz M_DESCD")
    A(f"  s_mov_b64 exec, vcc")
    A(f"  ds_write_b32 v{REC}, v{REC+1}")
    A(f"  v_add_u32 v{REC}, 32, v{REC}")
    A(f"  v_add_u32 v30, -8, v30")
    A(f"  s_branch M_DESC")
    A("M_DESCD:")
    A(f"  s_mov_b64 exec, -1")
    A(f"  s_cmp_lg_u32 s{sWV}, 0")
    A(f"  s_cbranch_scc1 M_NODEG")
    A(f"  v_add_u32 v3, {DEG-CNT}, v3")
    A(f"  ds_add_u32 v3, v17")
    A("M_NODEG:")
    A("  s_waitcnt lgkmcnt(0)")
    for k in range(16):
        r=RC+2*k
        A(f"  s_mov_b64 exec, s[{sMK+2*k}:{sMK+2*k+1}]")
        A(f"  v_lshl_add_u32 v{r+1}, v{RK+k}, 2, v{r+1}")
        A(f"  ds_write_b32 v{r+1}, v{r}")
    A(f"  s_mov_b64 exec, -1")
    A(f"  s_add_u32 s{sNT}, s{sNT}, 3")
    A(f"  s_lshr_b32 s{sNT}, s{sNT}, 2")
    A(f"  s_add_u32 s{sCNT}, s{sNT}, 7")
    A(f"  s_sub_u32 s{sCNT}, s{sCNT}, s{sWV}")
    A(f"  s_lshr_b32 s{sCNT}, s{sCNT}, 3")
    A(f"  v_mov_b32 v{CHK}, 0")
    A(f"  v_mov_b32 v{CHK+1}, 0")
    A(f"  v_mov_b32 v{N_}, 0")
    A(f"  v_mov_b32 v{N_+1}, 0")
    A(f"  v_mov_b32 v{DN}, 1.0")
    A(f"  v_mov_b32 v{DN+1}, 1.0")
    A(f"  v_add_u32 v{AD[1]}, {40*RS}, v{L4}")
    A(f"  v_add_u32 v{AD[1]+1}, {40*RS}, v{L4}")
    A("  s_waitcnt lgkmcnt(0)")
    A("  s_barrier")
    A(f"  s_cmp_eq_u32 s{sCNT}, 0")
    A(f"  s_cbranch_scc1 M_DONE")
    A(f"  ds_read_b128 {q4('v',REC)}, v{P128}")
    A(f"  ds_read_b128 {q4('v',D[0])}, v{P128} offset:1024")
    A(f"  ds_read_b128 {q4('v',D[0]+4)}, v{P128} offset:2048")
    A(f"  ds_read_b32 v{A5[0]}, v{P32}")
    A(f"  ds_read_b64 {v2(AD[0])}, v{PD}")
    A("  s_waitcnt lgkmcnt(4)")
    L+=dma(0)
    A("  s_waitcnt lgkmcnt(3)")
    for s in range(4): A(f"  v_mov_b32 v{REC+s}, v{D[0]+s}")
    L+=dma(1)
    A("  s_waitcnt lgkmcnt(0)")
    A(f"  v_add_u32 v{AD[0]}, v{AD[0]}, v{L4}")
    A(f"  v_add_u32 v{AD[0]+1}, v{AD[0]+1}, v{L4}")
    m=a5mask(0); L+=[m[0],m[3],m[4]]
    Q=DSQ()
    L+=bd_reads(Q,0,0)+bd_reads(Q,1,0)
    for s in range(4): A(f"  v_mov_b32 v{REC+s}, v{D[0]+4+s}")
    A("  s_waitcnt vmcnt(4)")
    for s in range(4): A(f"  ds_read_b128 {q4('a',X[0]+4*s)}, v{XA+s}")
    A("  s_waitcnt lgkmcnt(0)")
    L+=dma(0)
    L+=mfmas(D[0],0,0)
    A("  s_nop 7"); A("  s_nop 3")
    A(f"  s_cmp_lg_u32 s{sMODE}, 0")
    A(f"  s_cbranch_scc1 M_LOOPS")
    L=fix(L)
    L+=mainloop(False)
    L+=mainloop(True)
    E=[]; A=E.append
    A("M_DONE:")
    A(f"  v_add_f32 v{CHK}, v{CHK}, v{CHK+1}")
    A(f"  v_mov_b32 v2, 1")
    A(f"  v_mov_b32 v31, {OVF}")
    A(f"  v_cmp_ngt_f32 vcc, s{sTH}, v{CHK}")
    A(f"  s_mov_b64 exec, vcc")
    A(f"  ds_write_b32 v31, v2")
    A(f"  s_mov_b64 exec, -1")
    A(f"  v_and_b32 v30, 15, v1")
    A(f"  s_lshr_b32 s41, s{sWV}, 1")
    A(f"  s_lshl_b32 s41, s41, 4")
    A(f"  v_add_u32 v30, s41, v30")
    A(f"  v_mul_u32_u24 v3, {RS}, v30")
    A(f"  v_lshrrev_b32 v17, 4, v1")
    A(f"  v_lshl_add_u32 v3, v17, 5, v3")
    A(f"  v_add_u32 v3, {S_}, v3")
    A("  s_waitcnt vmcnt(0) lgkmcnt(0)")
    A("  s_barrier")
    A(f"  s_cmp_lg_u32 s{sMORE}, 0")
    A(f"  s_cbranch_scc1 M_NEXT")
    A(f"  s_cmp_ge_u32 s{sWV}, 6")
    A(f"  s_cbranch_scc1 M_EPD")
    for s in range(4):
        A(f"  ds_read_b128 {q4('v',D[0]+8*s)}, v3 offset:{128*s}")
        A(f"  ds_read_b128 {q4('v',D[0]+8*s+4)}, v3 offset:{128*s+16}")
    A(f"  v_lshlrev_b32 v2, 2, v30")
    A(f"  v_add_u32 v2, {DEG}, v2")
    A(f"  ds_read_b32 v2, v2")
    A(f"  s_mov_b32 s40, 0xffff0000")
    ACC=[18,22]
    for s in range(4):
        A(f"  s_waitcnt lgkmcnt({7-2*s})")
        b=D[0]+8*s; hi=T+8*(s&1); lo=hi+4
        for j in range(4): A(f"  v_cvt_pk_bf16_f32 v{hi+j}, v{b+2*j}, v{b+2*j+1}")
        for cc in range(2):
            c="0" if s==0 else q4('v',ACC[cc])
            A(f"  v_mfma_f32_16x16x32_bf16 {q4('v',ACC[cc])}, {q4('a',W2+16*cc+4*s)}, {q4('v',hi)}, {c}")
        for j in range(4):
            A(f"  v_lshlrev_b32 v{REC}, 16, v{hi+j}")
            A(f"  v_and_b32 v{REC+1}, s40, v{hi+j}")
            A(f"  v_sub_f32 v{b+2*j}, v{b+2*j}, v{REC}")
            A(f"  v_sub_f32 v{b+2*j+1}, v{b+2*j+1}, v{REC+1}")
        for j in range(4): A(f"  v_cvt_pk_bf16_f32 v{lo+j}, v{b+2*j}, v{b+2*j+1}")
        for cc in range(2):
            A(f"  v_mfma_f32_16x16x32_bf16 {q4('v',ACC[cc])}, {q4('a',W2+16*cc+4*s)}, {q4('v',lo)}, {q4('v',ACC[cc])}")
    A("  s_waitcnt lgkmcnt(0)")
    A(f"  v_cvt_f32_u32 v2, v2")
    for cc in range(2):
        for j in range(2):
            A(f"  v_lshlrev_b32 v{D[0]+4*cc+2*j}, 16, v{B2+2*cc+j}")
            A(f"  v_and_b32 v{D[0]+4*cc+2*j+1}, s40, v{B2+2*cc+j}")
    for i in range(8): A(f"  v_mul_f32 v{D[0]+i}, v{D[0]+i}, v2")
    A(f"  s_mov_b32 s42, 0x3f317218")
    A(f"  v_add_u32 v3, s{sN0}, v30")
    A(f"  v_lshlrev_b32 v3, 7, v3")
    A(f"  v_lshl_add_u32 v3, v17, 3, v3")
    A(f"  s_and_b32 s43, s{sWV}, 1")
    A(f"  s_lshl_b32 s43, s43, 6")
    A(f"  v_cmp_gt_u32 vcc, s{sNN}, v30")
    A(f"  s_mov_b64 exec, vcc")
    for i in range(8): A(f"  v_fma_f32 v{D[0]+i}, v{18+i}, s42, v{D[0]+i}")
    for cc in range(2):
        for j in range(2): A(f"  v_cvt_pk_bf16_f32 v{T+2*cc+j}, v{D[0]+4*cc+2*j}, v{D[0]+4*cc+2*j+1}")
        A(f"  buffer_store_dwordx2 {v2(T+2*cc)}, v3, s[{sOUT}:{sOUT+3}], s43 offen offset:{32*cc}")
    A(f"  v_mul_f32 v2, 0, v18")
    for i in range(1,8): A(f"  v_fma_f32 v2, v{18+i}, 0, v2")
    A(f"  v_cmp_u_f32 vcc, v2, v2")
    A(f"  v_mov_b32 v2, 1")
    A(f"  s_mov_b64 exec, vcc")
    A(f"  ds_write_b32 v31, v2")
    A(f"  s_mov_b64 exec, -1")
    A("M_EPD:")
    A(f"  s_cmp_lg_u32 s{sMODE}, 0")
    A(f"  s_cbranch_scc1 M_EXIT")
    A("  s_waitcnt lgkmcnt(0)")
    A("  s_barrier")
    A(f"  ds_read_b32 v2, v31")
    A("  s_waitcnt lgkmcnt(0)")
    A(f"  v_readfirstlane_b32 s40, v2")
    A(f"  s_cmp_lg_u32 s40, 0")
    A(f"  s_cbranch_scc1 M_RESTART")
    A("M_EXIT:")
    A("  s_endpgm")
    A("M_RESTART:")
    A(f"  s_mov_b32 s{sMODE}, 1")
    A(f"  s_mov_b32 s{sRB}, -32")
    A(f"  v_lshlrev_b32 v3, 4, v0")
    for i in range(4): A(f"  v_mov_b32 v{T+i}, 0")
    fill(E, Z0, DEG+256-Z0, T)
    A("M_NEXT:")
    A(f"  s_add_u32 s{sRB}, s{sRB}, 32")
    round_head(E,False)
    A("  s_branch M_COUNT")
    L+=fix(E)
    return L
```

```python
import sys
sys.path.insert(0,'gen')
from k1 import *
from k2 import *
ref=open('gather_scatter__edge_featured_mpnn_mpnn__graph.s.ref').read().split('\n')
hdr=[l for l in ref if l.startswith(';') and '@launch' not in l and 'Override' not in l and 'grid=ceil' not in l]
out=hdr+[f"; @launch kernel=part_kernel grid=(263,1,1) block=(640,1,1) lds={K1_LDS}",
         f"; @launch kernel=main_kernel grid=(256,1,1) block=(512,1,1) lds={K2_LDS}",
         '.amdgcn_target "amdgcn-amd-amdhsa--gfx950"', '.text']
def kern(name, body):
    return [f".globl {name}", ".p2align 8", f".type {name},@function"]+body
def desc(name, nv, acc, ns):
    return [f".amdhsa_kernel {name}", f"  .amdhsa_next_free_vgpr {nv}", f"  .amdhsa_next_free_sgpr {ns}", f"  .amdhsa_accum_offset {acc}",
            "  .amdhsa_group_segment_fixed_size 0", "  .amdhsa_kernarg_size 88", "  .amdhsa_user_sgpr_count 2",
            "  .amdhsa_user_sgpr_kernarg_segment_ptr 1", "  .amdhsa_system_sgpr_workgroup_id_x 1", ".end_amdhsa_kernel"]
out+=kern('part_kernel',kernel1())+kern('main_kernel',kernel2())
out+=['.section .rodata,"a"','.p2align 6']+desc('part_kernel',44,44,102)+['.p2align 6']+desc('main_kernel',NV+NA,NV,102)
dst=sys.argv[1] if len(sys.argv)>1 else 'gather_scatter__edge_featured_mpnn_mpnn__graph.s'
open(dst,'w').write('\n'.join(out)+'\n')
print('LDS',K1_LDS,K2_LDS,'lines',len(out))
```

```python
from asmlib import *
WS_REC=0; WS_OFF=0x500000; WS_W1A=0x580000; WS_W1B=0x584000; WS_W2=0x588000; WS_SIZE=0x700000
LOG2E_BITS=0x3FB8AA3B
def srd(L, d, b, size):
    L += [f"  s_mov_b32 s{d}, s{b}", f"  s_mov_b32 s{d+1}, s{b+1}", f"  s_mov_b32 s{d+2}, {size}", f"  s_mov_b32 s{d+3}, 0x00020000"]
def scan64(L, v):
    for sh in (1,2,4,8):
        L.append(f"  v_add_u32_dpp v{v}, v{v}, v{v} row_shr:{sh} row_mask:0xf bank_mask:0xf bound_ctrl:0")
    L.append(f"  v_add_u32_dpp v{v}, v{v}, v{v} row_bcast:15 row_mask:0xa bank_mask:0xf")
    L.append(f"  v_add_u32_dpp v{v}, v{v}, v{v} row_bcast:31 row_mask:0xc bank_mask:0xf")
import os
TS=int(os.environ.get('TS','0'))
K1V=int(os.environ.get('K1V','0'))
def ts1(L,i,real=False):
    if not TS: return
    L.append(f"  s_memrealtime s[{84+2*i}:{85+2*i}]" if real else f"  s_memtime s[{84+2*i}:{85+2*i}]")
    L.append("  s_waitcnt lgkmcnt(0)")
def ts1_store(L):
    if not TS: return
    A=L.append
    A("  s_waitcnt vmcnt(0)")
    A("  s_memrealtime s[100:101]")
    A("  v_lshrrev_b32 v2, 6, v0")
    A("  v_readfirstlane_b32 s41, v2")
    A("  s_waitcnt lgkmcnt(0)")
    A(f"  s_lshl_b32 s40, s2, 4")
    A(f"  s_add_u32 s40, s40, s41")
    A(f"  s_lshl_b32 s40, s40, 6")
    A(f"  s_add_u32 s40, s40, 0x680000")
    A("  v_mov_b32 v2, 0")
    A("  s_mov_b64 exec, 1")
    for i in range(9):
        A(f"  v_mov_b32 v3, s{84+2*i}")
        A(f"  buffer_store_dword v3, v2, s[24:27], s40 offen offset:{4*i}")
K1_STAGE=2560
K1_LDS=K1_STAGE+20000
def kernel1():
    L=[]
    A=L.append
    A("part_kernel:")
    A("  s_cmp_ge_u32 s2, 262")
    A("  s_cbranch_scc1 P_EXIT")
    A("  s_cmp_ge_u32 s2, 256")
    A("  s_cbranch_scc1 P_PREP")
    A("  s_load_dwordx4 s[4:7], s[0:1], 8")
    A("  s_load_dwordx2 s[8:9], s[0:1], 24")
    A("  s_load_dwordx2 s[10:11], s[0:1], 80")
    A("  v_lshlrev_b32 v1, 2, v0")
    A("  v_mov_b32 v2, 0")
    A("  ds_write_b32 v1, v2")
    A("  v_lshlrev_b32 v1, 4, v0")
    A("  v_lshlrev_b32 v3, 3, v0")
    A("  s_mul_i32 s3, s2, 10000")
    A("  s_mul_i32 s28, s2, 5000")
    A("  s_mul_i32 s29, s2, 20000")
    A("  s_add_u32 s30, s29, 10000")
    A("  s_mov_b32 s31, 214749")
    A("  s_mov_b32 s32, 0xffff0000")
    A("  v_mov_b32 v2, 1")
    A("  v_cmp_gt_u32 vcc, 625, v0")
    A("  s_and_saveexec_b64 s[34:35], vcc")
    ts1(L,0,True); ts1(L,1)
    A("  s_waitcnt lgkmcnt(0)")
    srd(L,16,8,2560000)
    A("  buffer_load_dwordx4 v[8:11], v1, s[16:19], s3 offen")
    srd(L,12,6,2560000)
    A("  buffer_load_dwordx4 v[4:7], v1, s[12:15], s3 offen")
    srd(L,20,4,1280000)
    A("  buffer_load_dwordx2 v[12:13], v3, s[20:23], s28 offen")
    srd(L,24,10,WS_SIZE)
    if K1V&1:
        A("  s_load_dwordx2 s[44:45], s[0:1], 0")
        A("  s_load_dwordx2 s[46:47], s[0:1], 64")
        A("  s_load_dwordx4 s[48:51], s[0:1], 32")
        A("  s_load_dwordx2 s[52:53], s[0:1], 56")
        A("  v_cmp_gt_u32 vcc, 64, v0")
        A("  s_cbranch_vccz P_NOWARM")
        A("  s_lshr_b32 s36, s2, 3")
        A("  s_and_b32 s36, s36, 7")
        A("  s_mul_i32 s36, s36, 2560")
        A("  v_mul_u32_u24 v41, 20480, v0")
        A("  v_mov_b32 v42, 0")
        A("  s_waitcnt lgkmcnt(0)")
        srd(L,56,44,1280000)
        A("  buffer_load_dword v43, v41, s[56:59], s36 offen")
        srd(L,60,46,1280000)
        A("  buffer_load_dword v43, v41, s[60:63], s36 offen")
        srd(L,64,48,33024)
        A("  buffer_load_dword v43, v41, s[64:67], s36 offen")
        srd(L,68,50,256)
        A("  buffer_load_dword v43, v42, s[68:71], 0 offen")
        srd(L,72,52,128)
        A("  buffer_load_dword v43, v42, s[72:75], 0 offen")
        A(f"  s_mov_b32 s37, {WS_W1A}")
        A("  v_lshlrev_b32 v42, 10, v0")
        A("  buffer_load_dword v43, v42, s[24:27], s37 offen")
        A("  s_branch P_WARMD")
        A("P_NOWARM:")
        for i in range(6): A("  buffer_load_dword v43, v1, s[16:19], s3 offen")
        A("P_WARMD:")
    ts1(L,2)
    A("  s_barrier")
    A(f"  s_waitcnt vmcnt({2+(6 if K1V&1 else 0)})")
    ts1(L,3)
    for i in range(4):
        A(f"  v_mul_u32_u24 v{14+i}, s31, v{8+i}")
    for i in range(4):
        A(f"  v_lshrrev_b32 v{14+i}, 21, v{14+i}")
    for i in range(4):
        A(f"  v_and_b32 v{14+i}, 0x3fc, v{14+i}")
        A(f"  ds_add_rtn_u32 v{18+i}, v{14+i}, v2")
    A(f"  s_waitcnt vmcnt({6 if K1V&1 else 0})")
    ts1(L,4)
    A("  v_lshl_or_b32 v4, v12, 16, v4")
    A("  v_and_or_b32 v5, v12, s32, v5")
    A("  v_lshl_or_b32 v6, v13, 16, v6")
    A("  v_and_or_b32 v7, v13, s32, v7")
    A("  s_waitcnt lgkmcnt(0)")
    A("  s_barrier")
    A("  v_cmp_gt_u32 vcc, 64, v0")
    A("  s_cbranch_vccz P_NOSCAN")
    A("  ds_read_b128 v[24:27], v1")
    A("  s_lshl_b32 s33, s2, 10")
    A(f"  s_add_u32 s33, s33, {WS_OFF}")
    A("  s_waitcnt lgkmcnt(0)")
    A("  v_add_u32 v29, v24, v25")
    A("  v_add_u32 v30, v29, v26")
    A("  v_add_u32 v31, v30, v27")
    A("  v_mov_b32 v28, v31")
    scan64(L,28)
    A("  v_sub_u32 v32, v28, v31")
    A("  v_add_u32 v33, v32, v24")
    A("  v_add_u32 v34, v32, v29")
    A("  v_add_u32 v35, v32, v30")
    A(f"  v_mov_b32 v40, {K1_STAGE}")
    for i in range(4):
        A(f"  v_lshl_add_u32 v{36+i}, v{32+i}, 3, v40")
    A("  ds_write_b128 v1, v[36:39] offset:1024")
    for i in range(4):
        A(f"  v_lshl_or_b32 v{32+i}, v{24+i}, 16, v{32+i}")
    A("  buffer_store_dwordx4 v[32:35], v1, s[24:27], s33 offen")
    A("  s_waitcnt lgkmcnt(0)")
    A("P_NOSCAN:")
    A("  s_barrier")
    ts1(L,5)
    for i in range(4):
        A(f"  ds_read_b32 v{14+i}, v{14+i} offset:1024")
    for i in range(4):
        A(f"  s_waitcnt lgkmcnt({3-i})")
        A(f"  v_lshl_add_u32 v{14+i}, v{18+i}, 3, v{14+i}")
    for i in range(4):
        A(f"  ds_write2_b32 v{14+i}, v{4+i}, v{8+i} offset0:0 offset1:1")
    A("  s_waitcnt lgkmcnt(0)")
    A("  s_barrier")
    ts1(L,6)
    A(f"  ds_read_b128 v[4:7], v1 offset:{K1_STAGE}")
    A(f"  ds_read_b128 v[8:11], v1 offset:{K1_STAGE+10000}")
    A("  s_waitcnt lgkmcnt(1)")
    A("  buffer_store_dwordx4 v[4:7], v1, s[24:27], s29 offen")
    A("  s_waitcnt lgkmcnt(0)")
    A("  buffer_store_dwordx4 v[8:11], v1, s[24:27], s30 offen")
    ts1(L,7)
    ts1_store(L)
    A("P_EXIT:")
    A("  s_endpgm")
    A("P_PREP:")
    A("  s_load_dwordx2 s[4:5], s[0:1], 32")
    A("  s_load_dwordx2 s[6:7], s[0:1], 48")
    A("  s_load_dwordx2 s[10:11], s[0:1], 80")
    A("  v_cmp_gt_u32 vcc, 512, v0")
    A("  s_cbranch_vccz P_EXIT")
    A("  s_sub_u32 s3, s2, 256")
    A("  s_and_b32 s28, s3, 1")
    A("  s_lshl_b32 s28, s28, 9")
    A("  v_add_u32 v1, s28, v0")
    A("  s_lshr_b32 s29, s3, 1")
    A("  s_lshl_b32 s30, s29, 14")
    A(f"  s_add_u32 s30, s30, {WS_W1A}")
    A("  s_mov_b32 s31, 1.0")
    A("  s_cmp_eq_u32 s29, 0")
    A(f"  s_cselect_b32 s31, 0xBFB8AA3B, s31")
    A("  s_waitcnt lgkmcnt(0)")
    srd(L,24,10,WS_SIZE)
    srd(L,12,4,129*256)
    srd(L,16,6,128*128)
    A("  s_cmp_eq_u32 s29, 2")
    A("  s_cbranch_scc1 P_PREP2")
    A("  v_bfe_u32 v2, v1, 5, 1")
    A("  v_bfe_u32 v3, v1, 6, 2")
    A("  v_lshlrev_b32 v2, 13, v2")
    A("  v_lshl_add_u32 v2, v3, 11, v2")
    A("  v_lshrrev_b32 v3, 8, v1")
    A("  v_lshl_add_u32 v2, v3, 6, v2")
    A("  v_and_b32 v3, 31, v1")
    A("  v_lshl_add_u32 v2, v3, 1, v2")
    A("  s_lshl_b32 s32, s29, 14")
    for j in range(8):
        A(f"  buffer_load_ushort v{8+j}, v2, s[12:15], s32 offen offset:{256*j}")
    A("  s_branch P_PREP3")
    A("P_PREP2:")
    A("  v_bfe_u32 v2, v1, 4, 2")
    A("  v_bfe_u32 v3, v1, 6, 2")
    A("  v_lshlrev_b32 v2, 10, v2")
    A("  v_lshl_add_u32 v2, v3, 12, v2")
    A("  v_lshrrev_b32 v3, 8, v1")
    A("  v_lshl_add_u32 v2, v3, 5, v2")
    A("  v_and_b32 v3, 15, v1")
    A("  v_lshl_add_u32 v2, v3, 1, v2")
    for j in range(8):
        A(f"  buffer_load_ushort v{8+j}, v2, s[16:19], 0 offen offset:{128*j}")
    A("P_PREP3:")
    A("  v_lshlrev_b32 v1, 4, v1")
    A("  s_waitcnt vmcnt(0)")
    for j in range(8):
        A(f"  v_lshlrev_b32 v{8+j}, 16, v{8+j}")
    for j in range(8):
        A(f"  v_mul_f32 v{8+j}, s31, v{8+j}")
    for j in range(4):
        A(f"  v_cvt_pk_bf16_f32 v{4+j}, v{8+2*j}, v{9+2*j}")
    A("  buffer_store_dwordx4 v[4:7], v1, s[24:27], s30 offen")
    A("  s_endpgm")
    return fix(L)
```

```python
from asmlib import *
from k1 import *
import os
CAP=28
XB=0; BD=65536; RS=528; S_=BD+41*RS; DEG=S_+72*RS; CAR=DEG+256; OVF=CAR+256; CNT=OVF+16; MORE=CNT+256; GB=MORE+16
SORT=(GB+256+127)//128*128; LMAX=(CAP*256//8+40+31)//32; SORTN=32*LMAX*32+128; DESC=SORT+SORTN; DESCN=(LMAX+2)*128; K2_LDS=DESC+DESCN
assert K2_LDS<=163840
Z0=BD+40*RS
DUMMY=(40*RS)|((40*RS+S_-BD)<<16)
XA=4; SW=8; OH=10; L4=12; P128=13; P32=14; PD=15; CHK=16; N_=18; DN=20; AA=22; R_=24; AB=26; AS=28
REC=32; A5=[36,40]; B5=[44,48,52,56]; D=[60,76]; T=92; B2=108; DR=112; CIN=114; NV=116
W=0; X=[64,80]; W2=96; NA=128
sX=4; sWS=8; sW1=12; sOUT=16; sB1=20; sB2=24
sN0=28; sNN=29; sWV=30; sRB=31; sMODE=32; sNT=33; sCNT=34; sMORE=35; s128=36; sM0=[37,38]; sTH=39; sBK=3
sMK=52
NLOG2E=0xBFB8AA3B
TS=int(os.environ.get('TS','0'))
ALIGN=int(os.environ.get('ALIGN','0'))
TSP=os.environ.get('TSP','start,bar1,bar2,bar3,loop,done,bar4').split(',')
def ts(L,name,real=False):
    if not TS: return
    if real: i=0
    elif name in TSP: i=1+TSP.index(name)
    else: return
    L.append(f"  s_memrealtime s[{84+2*i}:{85+2*i}]" if real else f"  s_memtime s[{84+2*i}:{85+2*i}]")
    L.append("  s_waitcnt lgkmcnt(0)")
def ts_store(L, base, wvs):
    if not TS: return
    A=L.append
    A("  s_memrealtime s[100:101]")
    A("  s_waitcnt lgkmcnt(0)")
    A(f"  s_lshl_b32 s40, s2, 4")
    A(f"  s_add_u32 s40, s40, {wvs}")
    A(f"  s_lshl_b32 s40, s40, 6")
    A(f"  s_add_u32 s40, s40, {base}")
    A("  v_mov_b32 v2, 0")
    A("  s_mov_b64 exec, 1")
    for i in range(9):
        A(f"  v_mov_b32 v3, s{84+2*i}")
        A(f"  buffer_store_dword v3, v2, s[{sWS}:{sWS+3}], s40 offen offset:{4*i}")
    A(f"  v_mov_b32 v3, s{sNT}")
    A(f"  buffer_store_dword v3, v2, s[{sWS}:{sWS+3}], s40 offen offset:36")
def q4(p,r): return f"{p}[{r}:{r+3}]"
def v2(r): return f"v[{r}:{r+1}]"
def pk(op,d,a,b,c=None):
    f=lambda r: r if isinstance(r,str) else v2(r)
    if c is None: return f"  v_pk_{op}_f32 {f(d)}, {f(a)}, {f(b)}"
    return f"  v_pk_{op}_f32 {f(d)}, {f(a)}, {f(b)}, {f(c)}"
def sdwa_add(d,a,b,w): return f"  v_add_u32_sdwa v{d}, v{a}, v{b} dst_sel:DWORD dst_unused:UNUSED_PAD src0_sel:WORD_{w} src1_sel:DWORD"
class DSQ:
    def __init__(s): s.q=[]
    def issue(s,tag): s.q.append(tag)
    def wait(s,*tags):
        idx=-1
        for i,t in enumerate(s.q):
            if t in tags: idx=i
        if idx<0: return []
        n=len(s.q)-1-idx
        n=min(n,15)
        s.q=s.q[len(s.q)-n:] if n>0 else []
        return [f"  s_waitcnt lgkmcnt({n})"]
def chain(Dc):
    ins=[pk('add',AA,T,"1.0")+" op_sel_hi:[1,0]", pk('fma',N_,Dc,T+2,Dc), pk('fma',DN,AA,T+2,AA), pk('fma',N_,Dc+2,AA,N_)]
    for j in range(2,8):
        ins+=[pk('fma',AA,Dc+2*j,DN,N_), pk('fma',DN,DN,T+2*j,DN), pk('fma',N_,N_,T+2*j,AA)]
    return ins
def chain_safe(Dc):
    ins=[]
    for j in range(8): ins.append(pk('add',T+2*j,T+2*j,"1.0")+" op_sel_hi:[1,0]")
    for i in range(16): ins.append(f"  v_rcp_f32 v{T+i}, v{T+i}")
    ins.append(pk('mul',N_,Dc,T))
    for j in range(1,8): ins.append(pk('fma',N_,Dc+2*j,T+2*j,N_))
    return ins
def mfmas(Dn_,tn,pp):
    ms=[f"  v_mfma_f32_32x32x16_bf16 v[{Dn_}:{Dn_+15}], {q4('v',A5[pp])}, {q4('v',B5[tn])}, 0"]
    for s in range(4):
        ms.append(f"  v_mfma_f32_32x32x16_bf16 v[{Dn_}:{Dn_+15}], {q4('a',X[pp]+4*s)}, {q4('a',W+16*tn+4*s)}, v[{Dn_}:{Dn_+15}]")
    return ms
def bd_reads(Q,tt):
    Q.issue(f'b5_{tt}'); Q.issue(f'b5_{tt}')
    return [f"  ds_read_b32 v{B5[tt]+1}, v{AB} offset:{128*tt}", f"  ds_read_b32 v{B5[tt]+2}, v{AB+1} offset:{128*tt}"]
def cin_reads(Q,tt):
    Q.issue('cin'); Q.issue('cin')
    return [f"  ds_read_b32 v{CIN}, v{AS} offset:{128*tt}", f"  ds_read_b32 v{CIN+1}, v{AS+1} offset:{128*tt}"]
def s_writes(Q,tt):
    Q.issue('wr'); Q.issue('wr')
    return [f"  ds_write_b32 v{AS}, v{R_} offset:{128*tt}", f"  ds_write_b32 v{AS+1}, v{R_+1} offset:{128*tt}"]
def dma(buf, rec=REC):
    out=[]
    for s in range(4):
        out.append(f"  s_mov_b32 m0, s{sM0[buf]}" if s==0 else "  s_add_u32 m0, m0, 1024")
        out.append(f"  v_mad_u32_u16 v{rec+s}, v{rec+s}, s{s128}, v{SW+(s&1)}")
        out.append(f"  buffer_load_dwordx4 v{rec+s}, s[{sX}:{sX+3}], 0 offen lds")
    return out
def a5mask(pp):
    return [f"  v_cmp_le_i16 vcc, 0, v{A5[pp]}",
            f"  v_cndmask_b32 v{A5[pp]+1}, 0, v{OH}, vcc", f"  v_cndmask_b32 v{A5[pp]+2}, 0, v{OH+1}, vcc"]
def fin_ops(Q,safe,tt):
    out=[]
    if not safe:
        out.append(pk('add',CHK,CHK,DN))
        out+=Q.wait('cin')
        out.append(pk('fma',R_,N_,R_,CIN))
    else:
        out+=Q.wait('cin')
        out.append(pk('add',R_,N_,CIN))
    return out+s_writes(Q,tt)
def tile(Q,p,safe):
    q=1-p; out=[]
    for t in range(4):
        Dc=D[t&1]; Dn_=D[(t+1)&1]; tn=(t+1)%4; pp=p if t<3 else q
        tprev=(t+3)%4
        tr=[f"  v_exp_f32 v{T+i}, v{Dc+i}" for i in range(16)]
        if not safe: tr+=[f"  v_rcp_f32 v{R_}, v{DN}", f"  v_rcp_f32 v{R_+1}, v{DN+1}"]
        else: tr+=["  s_nop 0","  s_nop 0"]
        ms=mfmas(Dn_,tn,pp)
        side={}
        def at(pos,f): side.setdefault(pos,[]).append(f)
        def rd(tag,txt):
            def f():
                Q.issue(tag); return [txt]
            return f
        at(2,lambda: bd_reads(Q,(t+2)%4))
        at(3,lambda: cin_reads(Q,tprev))
        if t==0:
            at(5,lambda: ["  s_waitcnt vmcnt(4)"])
            for s,pos in enumerate((5,6,8,9)):
                at(pos,rd('x',f"  ds_read_b128 {q4('a',X[q]+4*s)}, v{XA+s} offset:{4096*q}"))
            at(11,rd('rec',f"  ds_read_b128 {q4('v',REC)}, v{P128} offset:{(3+p)*32}"))
            at(12,rd('a5',f"  ds_read_b32 v{A5[q]}, v{P32} offset:{(1+p)*32}"))
        if t==1:
            d=dma(q)
            at(5,lambda: Q.wait('rec','x')+d[0:3])
            at(6,lambda: d[3:6]); at(8,lambda: d[6:9]); at(9,lambda: d[9:12])
            m=a5mask(q)
            at(11,lambda: Q.wait('a5')+[m[0]])
            at(12,lambda: Q.wait('desc')+[sdwa_add(AB,DR,L4,0), sdwa_add(AB+1,DR+1,L4,0)])
            at(14,lambda: [m[1],m[2]])
        if t==3 and p==1:
            at(5,lambda: [f"  v_add_u32 v{P128}, 64, v{P128}", f"  v_add_u32 v{P32}, 64, v{P32}", f"  v_add_u32 v{PD}, 256, v{PD}"])
        k=0
        for i,x in enumerate(tr):
            if k<5 and i==1+3*k:
                if k==0: out+=Q.wait(f'b5_{tn}')
                if k==1 and t==3: out+=Q.wait('x')
                out.append(ms[k]); k+=1
            for f in side.get(i,[]): out+=f()
            out.append(x)
        out+=fin_ops(Q,safe,tprev)
        if t==0:
            out+=[sdwa_add(AS,DR,L4,1), sdwa_add(AS+1,DR+1,L4,1)]
            Q.issue('desc'); out.append(f"  ds_read_b64 {v2(DR)}, v{PD} offset:{(1+p)*128}")
        out+= chain_safe(Dc) if safe else chain(Dc)
    return out
def finish(safe):
    Q=DSQ()
    out=cin_reads(Q,3)
    if not safe: out+=[f"  v_rcp_f32 v{R_}, v{DN}", f"  v_rcp_f32 v{R_+1}, v{DN+1}"]
    return out+fin_ops(Q,safe,3)
def isize(l):
    c=Ins(l)
    if c.kind=='none': return 0
    if c.kind in('mfma','ds','vmem'): return 8
    lit=any(re.match(r'^(0x[0-9a-f]+|\d+)$',o) and (int(o,0)>64) for o in c.ops)
    if c.kind=='salu':
        if c.mn.startswith(('s_waitcnt','s_nop','s_cbranch','s_branch')): return 4
        return 8 if lit else 4
    if c.mn.startswith(('v_pk_','v_mad_','v_fma')) or c.mn.endswith(('_e64','_sdwa')): return 8
    return 8 if lit else 4
def align8(L):
    out=[]; off=0
    for l in L:
        n=isize(l)
        if n==8 and off%8==4:
            done=False
            for i in range(len(out)-1,-1,-1):
                if isize(out[i])==8: break
                c=Ins(out[i])
                if c.kind=='valu':
                    out[i]=out[i].replace(c.mn,c.mn+'_e64',1); done=True; break
            if not done: out.append("  s_nop 0")
            off+=4
        out.append(l); off+=n
    return out
def mainloop(safe):
    tag='S' if safe else 'F'
    Q=DSQ()
    tile(Q,0,safe); tile(Q,1,safe)
    b0=tile(Q,0,safe); b1=tile(Q,1,safe)
    L=b0+[f"  s_sub_u32 s{sCNT}, s{sCNT}, 1", f"  s_cmp_eq_u32 s{sCNT}, 0", f"  s_cbranch_scc1 M_FIN{tag}"]
    L+=b1+[f"  s_sub_u32 s{sCNT}, s{sCNT}, 1", f"  s_cmp_lg_u32 s{sCNT}, 0", f"  s_cbranch_scc1 M_LOOP{tag}"]
    L=fix(L)
    if ALIGN==1: L=align8(L)
    if ALIGN==2: L=align8([re.sub(r'v_exp_f32 ','v_exp_f32_e64 ',l) for l in L])
    fix(L+L, check_only=True, name='loop'+tag)
    L=[".p2align 6", f"M_LOOP{tag}:"]+L+[f"M_FIN{tag}:"]+fix(finish(safe))+["  s_branch M_DONE"]
    return L
def fill(L, base, nbytes, quad, tmp=2):
    n=nbytes//16; full=n//512; rem=n%512
    L.append(f"  v_add_u32 v{tmp}, {base}, v3")
    for i in range(full): L.append(f"  ds_write_b128 v{tmp}, {q4('v',quad)} offset:{8192*i}")
    if rem:
        L.append(f"  v_cmp_gt_u32 vcc, {rem}, v0")
        L.append(f"  s_mov_b64 exec, vcc")
        L.append(f"  ds_write_b128 v{tmp}, {q4('v',quad)} offset:{8192*full}")
        L.append(f"  s_mov_b64 exec, -1")
RC=D[0]; RK=T; OFS=18; REM=22; VOF=26
def round_head(L, first):
    A=L.append
    A(f"  v_lshrrev_b32 v2, 3, v0")
    A(f"  v_lshlrev_b32 v30, 10, v2")
    A(f"  s_lshl_b32 s40, s{sBK}, 2")
    A(f"  s_add_u32 s40, s40, {WS_OFF}")
    for j in range(4):
        A(f"  buffer_load_dword v{OFS+j}, v30, s[{sWS}:{sWS+3}], s40 offen")
        if j<3: A(f"  s_add_u32 s40, s40, 65536")
    if first:
        A(f"  v_lshrrev_b32 v31, 4, v1")
        A(f"  v_and_b32 v30, 7, v1")
        A(f"  v_xor_b32 v31, v31, v30")
        A(f"  v_lshlrev_b32 v{SW}, 4, v31")
        A(f"  v_xor_b32 v{SW+1}, 64, v{SW}")
        A(f"  v_bfe_u32 v30, v1, 3, 1")
        A(f"  v_bfe_u32 v31, v1, 4, 1")
        A(f"  v_lshl_or_b32 v30, v30, 1, v31")
        A(f"  v_lshrrev_b32 v17, 5, v1")
        A(f"  v_lshl_or_b32 v30, v17, 2, v30")
        A(f"  s_lshr_b32 s41, s{sWV}, 2")
        A(f"  s_lshl_b32 s42, s41, 5")
        A(f"  s_add_u32 s42, s42, s{sN0}")
        A(f"  v_add_u32 v{REC}, s42, v30")
        for s in range(1,4): A(f"  v_add_u32 v{REC+s}, {8*s}, v{REC}")
        L+=dma(0)
        A(f"  v_lshlrev_b32 v30, 4, v1")
        A(f"  s_and_b32 s43, s{sWV}, 3")
        A(f"  s_lshl_b32 s44, s43, 12")
        A(f"  s_add_u32 s44, s44, {WS_W1B}")
        for s in range(4): A(f"  buffer_load_dwordx4 {q4('a',X[1]+4*s)}, v30, s[{sWS}:{sWS+3}], s44 offen offset:{1024*s}")
        A(f"  v_and_b32 v31, 31, v1")
        A(f"  v_lshlrev_b32 v31, 1, v31")
        A(f"  s_lshl_b32 s44, s43, 6")
        A(f"  buffer_load_ushort v{DR}, v31, s[{sB1}:{sB1+3}], s44 offen")
        A(f"  s_mov_b32 s44, {128*256}")
        for t in range(4): A(f"  buffer_load_ushort v{B5[t]}, v31, s[{sW1}:{sW1+3}], s44 offen offset:{64*t}")
        ts(L,'iss1')
    A(f"  v_lshlrev_b32 v3, 4, v0")
    for i in range(4): A(f"  v_mov_b32 v{T+i}, 0")
    for i in range(4): A(f"  v_mov_b32 v{T+4+i}, 0x8000")
    for i in range(4): A(f"  v_mov_b32 v{T+8+i}, {DUMMY}")
    fill(L, SORT, SORTN, T+4)
    if first: fill(L, Z0, GB-Z0, T)
    else:
        fill(L, S_+41*RS, 31*RS, T)
        fill(L, CNT, GB-CNT, T)
    fill(L, DESC, DESCN, T+8)
    if first: ts(L,'fill')
    A(f"  v_lshrrev_b32 v2, 3, v0")
    A(f"  v_mul_u32_u24 v30, 20000, v2")
    A(f"  v_and_b32 v2, 7, v0")
    A(f"  v_lshl_add_u32 v30, v2, 4, v30")
    A(f"  v_lshlrev_b32 v2, 1, v2")
    A(f"  v_sub_u32 v31, {CAP}, v2")
    A(f"  v_add_u32 v2, s{sRB}, v2")
    A(f"  s_lshl_b32 s40, s{sRB}, 3")
    A(f"  v_mov_b32 v{CIN}, 0")
    for j in range(4):
        A(f"  s_waitcnt vmcnt({(13 if first else 0)+3-j})")
        A(f"  v_and_b32 v{VOF+j}, 0xffff, v{OFS+j}")
        A(f"  v_lshrrev_b32 v{REM+j}, 16, v{OFS+j}")
        A(f"  v_lshl_add_u32 v{VOF+j}, v{VOF+j}, 3, v30")
        A(f"  v_sub_u32 v{REM+j}, v{REM+j}, v2")
        A(f"  v_max_i32 v{CIN}, v{CIN}, v{REM+j}")
        A(f"  v_min_i32 v{REM+j}, v{REM+j}, v31")
        for u in range(2):
            for i in range(2):
                k=sMK+2*(4*j+2*u+i)
                A(f"  v_cmp_lt_i32_e64 s[{k}:{k+1}], {16*u+i}, v{REM+j}")
    if first: ts(L,'offs')
    A(f"  v_mov_b32 v2, 0x40000000")
    for j in range(4):
        for u in range(2):
            k=sMK+2*(4*j+2*u)
            A(f"  v_cndmask_b32_e64 v{30+u}, v2, v{VOF+j}, s[{k}:{k+1}]")
            A(f"  buffer_load_dwordx4 {q4('v',RC+8*j+4*u)}, v{30+u}, s[{sWS}:{sWS+3}], s40 offen offset:{128*u}")
        if j<3: A(f"  s_add_u32 s40, s40, {64*20000}")
    if first:
        A(f"  v_lshlrev_b32 v30, 4, v1")
        A(f"  s_lshl_b32 s40, s{sWV}, 11")
        A(f"  s_add_u32 s40, s40, {WS_W1A}")
        A(f"  s_mov_b32 m0, s{sM0[1]}")
        for j in range(2): A(f"  buffer_load_dwordx4 v30, s[{sWS}:{sWS+3}], s40 offen offset:{1024*j} lds")
        ts(L,'iss2')
        A(f"  v_and_b32 v2, 31, v1")
        A(f"  v_and_b32 v30, 28, v2")
        A(f"  v_bfe_u32 v31, v2, 1, 1")
        A(f"  v_and_b32 v3, 1, v2")
        A(f"  v_lshl_or_b32 v31, v3, 1, v31")
        A(f"  v_or_b32 v30, v30, v31")
        A(f"  v_bfe_u32 v31, v30, 1, 3")
        A(f"  v_lshlrev_b32 v30, 7, v30")
        A(f"  v_add_u32 v30, s{sM0[0]}, v30")
        A(f"  v_lshlrev_b32 v{REC+2}, 2, v17")
        A(f"  v_xor_b32 v31, v31, v{REC+2}")
        for s in range(4):
            A(f"  v_xor_b32 v{XA+s}, {s}, v31")
            A(f"  v_lshl_add_u32 v{XA+s}, v{XA+s}, 4, v30")
        A(f"  s_waitcnt vmcnt({9+8+2})")
        for s in range(4): A(f"  ds_read_b128 {q4('a',X[0]+4*s)}, v{XA+s}")
        A(f"  v_bfe_u32 v30, v2, 2, 1")
        A(f"  v_lshl_or_b32 v30, v30, 1, v3")
        A(f"  v_lshlrev_b32 v31, 1, v17")
        A(f"  v_mov_b32 v{REC+2}, 0x3f803f80")
        A(f"  v_cmp_eq_u32 vcc, v30, v31")
        A(f"  v_cndmask_b32 v{OH}, 0, v{REC+2}, vcc")
        A(f"  v_add_u32 v31, 1, v31")
        A(f"  v_cmp_eq_u32 vcc, v30, v31")
        A(f"  v_cndmask_b32 v{OH+1}, 0, v{REC+2}, vcc")
        A(f"  s_mov_b32 s46, {NLOG2E}")
        A(f"  s_mul_i32 s47, s41, {32*RS}")
        A(f"  s_lshl_b32 s44, s43, 7")
        A(f"  s_add_u32 s47, s47, s44")
        A(f"  v_mul_u32_u24 v30, {4*RS}, v17")
        A(f"  v_add3_u32 v30, v30, v{L4}, s47")
        A(f"  s_waitcnt vmcnt({8+2}) lgkmcnt(0)")
        ts(L,'bin')
        for s in range(4):
            c = "0" if s==0 else f"v[{T}:{T+15}]"
            A(f"  v_mfma_f32_32x32x16_bf16 v[{T}:{T+15}], {q4('a',X[0]+4*s)}, {q4('a',X[1]+4*s)}, {c}")
        A(f"  v_cmp_lt_u32 vcc, 31, v1")
        for t in range(4):
            r=B5[t]
            A(f"  v_lshlrev_b32 v{r}, 16, v{r}")
            A(f"  v_mul_f32 v{r}, s46, v{r}")
            A(f"  v_cvt_pk_bf16_f32 v{r+1}, 0, v{r}")
            A(f"  v_sub_f32 v{r}, v{r}, v{r+1}")
            A(f"  v_cvt_pk_bf16_f32 v{r}, 0, v{r}")
            A(f"  v_cndmask_b32 v{r}, v{r+1}, v{r}, vcc")
            A(f"  v_mov_b32 v{r+3}, 0")
        A(f"  v_lshlrev_b32 v{DR}, 16, v{DR}")
        A(f"  v_mul_f32 v{DR}, s46, v{DR}")
        for r in range(16):
            if r==4:
                A(f"  s_cmp_eq_u32 s41, 1")
                A(f"  s_cbranch_scc1 M_BDONE")
            A(f"  v_fma_f32 v{T+r}, v{T+r}, s46, v{DR}")
            A(f"  v_cvt_pk_bf16_f32 v{REC+(r&1)}, 0, v{T+r}")
            A(f"  v_sub_f32 v{REC+(r&1)}, v{T+r}, v{REC+(r&1)}")
            A(f"  v_cvt_pk_bf16_f32 v{T+r}, v{REC+(r&1)}, v{T+r}")
            A(f"  ds_write_b32 v30, v{T+r} offset:{(8*(r>>2)+(r&3))*RS}")
        A("M_BDONE:")
        ts(L,'bdone')
    else:
        A(f"  s_waitcnt vmcnt(0)")
def kernel2():
    L=[]; A=L.append
    A("main_kernel:")
    A("  s_cmp_ge_u32 s2, 256")
    A("  s_cbranch_scc1 M_EXIT")
    A("  s_load_dwordx2 s[48:49], s[0:1], 80")
    A("  s_load_dwordx2 s[50:51], s[0:1], 0")
    A("  s_load_dwordx4 s[40:43], s[0:1], 32")
    A("  s_load_dwordx4 s[44:47], s[0:1], 56")
    A("  v_and_b32 v1, 63, v0")
    A("  v_lshrrev_b32 v2, 6, v0")
    A(f"  v_readfirstlane_b32 s{sWV}, v2")
    A(f"  s_and_b32 s{sBK}, s2, 7")
    A(f"  s_lshl_b32 s{sBK}, s{sBK}, 5")
    A(f"  s_lshr_b32 s{sN0}, s2, 3")
    A(f"  s_or_b32 s{sBK}, s{sBK}, s{sN0}")
    A(f"  s_mul_i32 s{sN0}, s{sBK}, 625")
    A(f"  s_add_u32 s{sNN}, s{sN0}, 640")
    A(f"  s_add_u32 s{sN0}, s{sN0}, 15")
    A(f"  s_lshr_b32 s{sN0}, s{sN0}, 4")
    A(f"  s_lshr_b32 s{sNN}, s{sNN}, 4")
    A(f"  s_sub_u32 s{sNN}, s{sNN}, s{sN0}")
    A(f"  s_mov_b32 s{sRB}, 0")
    A(f"  s_mov_b32 s{sMODE}, 0")
    A(f"  s_mov_b32 s{s128}, 128")
    A(f"  s_mov_b32 s{sTH}, 0x5f800000")
    A(f"  s_lshl_b32 s{sM0[0]}, s{sWV}, 13")
    A(f"  s_add_u32 s{sM0[1]}, s{sM0[0]}, 4096")
    A(f"  v_and_b32 v2, 31, v1")
    A(f"  v_lshlrev_b32 v{L4}, 2, v2")
    A(f"  v_add_u32 v{L4}, {BD}, v{L4}")
    ts(L,0,True); ts(L,'start')
    A("  s_waitcnt lgkmcnt(0)")
    srd(L,sWS,48,WS_SIZE); srd(L,sX,50,1280000); srd(L,sW1,40,129*256); srd(L,sB1,42,256); srd(L,sB2,44,128); srd(L,sOUT,46,1280000)
    round_head(L,True)
    A("M_COUNT:")
    A("  s_waitcnt lgkmcnt(0)")
    A("  s_barrier")
    ts(L,'bar1')
    A(f"  s_lshl_b32 s40, s{sN0}, 2")
    A(f"  s_sub_u32 s40, {CNT}, s40")
    A(f"  v_mov_b32 v2, 1")
    A(f"  v_mov_b32 v31, {MORE}")
    A(f"  v_cmp_lt_i32 vcc, {CAP}, v{CIN}")
    A(f"  s_mov_b64 exec, vcc")
    A(f"  ds_write_b32 v31, v2")
    for j in range(4):
        for u in range(2):
            A(f"  s_waitcnt vmcnt({2+7-(2*j+u)})")
            for i in range(2):
                k=4*j+2*u+i; r=RC+8*j+4*u+2*i
                A(f"  s_mov_b64 exec, s[{sMK+2*k}:{sMK+2*k+1}]")
                A(f"  v_lshl_add_u32 v{r+1}, v{r+1}, 2, s40")
                A(f"  ds_add_rtn_u32 v{RK+k}, v{r+1}, v2")
    A(f"  s_mov_b64 exec, -1")
    A(f"  s_lshl_b32 s41, s{sWV}, 2")
    A(f"  v_lshrrev_b32 v30, 4, v1")
    A(f"  v_add_u32 v{P128}, s41, v30")
    A(f"  v_bfe_u32 v30, v1, 3, 1")
    A(f"  v_lshlrev_b32 v{DR}, 4, v30")
    A(f"  v_add_u32 v{DR}, {SORT}, v{DR}")
    A(f"  v_bfe_u32 v30, v1, 2, 1")
    A(f"  v_and_b32 v31, 1, v1")
    A(f"  v_lshl_or_b32 v30, v30, 1, v31")
    A(f"  v_add_u32 v{P32}, s41, v30")
    A(f"  v_bfe_u32 v30, v1, 3, 2")
    A(f"  v_bfe_u32 v31, v1, 1, 1")
    A(f"  v_lshl_or_b32 v30, v31, 2, v30")
    A(f"  v_lshlrev_b32 v{DR+1}, 2, v30")
    A(f"  v_add_u32 v{DR+1}, {SORT}, v{DR+1}")
    A(f"  s_lshl_b32 s41, s{sWV}, 4")
    A(f"  s_add_u32 s41, s41, {DESC}")
    A(f"  v_lshrrev_b32 v30, 5, v1")
    A(f"  v_lshl_add_u32 v{PD}, v30, 3, s41")
    A(f"  v_lshlrev_b32 v3, 2, v1")
    A(f"  v_add_u32 v3, {CNT}, v3")
    A(f"  v_lshlrev_b32 v{CIN+1}, 4, v1")
    A("  s_waitcnt vmcnt(0) lgkmcnt(0)")
    A("  s_barrier")
    ts(L,'bar2')
    A(f"  ds_read_b32 v17, v3")
    A(f"  v_mov_b32 v31, {MORE}")
    A(f"  ds_read_b32 v31, v31")
    A("  s_waitcnt lgkmcnt(1)")
    A(f"  v_add_u32 v30, 7, v17")
    A(f"  v_lshrrev_b32 v30, 3, v30")
    A(f"  v_mov_b32 v2, v30")
    scan64(L,2)
    A(f"  v_readlane_b32 s{sNT}, v2, 63")
    A(f"  v_sub_u32 v2, v2, v30")
    A(f"  v_mov_b32 v{REC}, {SORT}")
    A(f"  v_lshl_add_u32 v{REC}, v2, 5, v{REC}")
    A(f"  ds_write_b32 v3, v{REC} offset:{GB-CNT}")
    A(f"  s_add_u32 s{sNT}, s{sNT}, 31")
    A(f"  s_lshr_b32 s{sNT}, s{sNT}, 5")
    A(f"  s_max_u32 s42, s{sNT}, 1")
    A(f"  v_cvt_f32_u32 v{REC+3}, s42")
    A(f"  v_rcp_f32 v{REC+3}, v{REC+3}")
    A("  s_waitcnt lgkmcnt(0)")
    A(f"  v_readfirstlane_b32 s{sMORE}, v31")
    for k in range(16):
        r=RC+2*k
        A(f"  s_mov_b64 exec, s[{sMK+2*k}:{sMK+2*k+1}]")
        A(f"  ds_read_b32 v{r+1}, v{r+1} offset:{GB-CNT}")
    A(f"  s_mov_b64 exec, -1")
    A(f"  v_mul_f32 v{REC+3}, 0x47800000, v{REC+3}")
    A(f"  v_cvt_u32_f32 v{REC+3}, v{REC+3}")
    A(f"  v_add_u32 v{REC+3}, 1, v{REC+3}")
    A(f"  s_lshl_b32 s43, s{sNT}, 5")
    A(f"  v_mad_u32_u24 v{P128}, v{P128}, s43, v{DR}")
    A(f"  v_mad_u32_u24 v{P32}, v{P32}, s43, v{DR+1}")
    A(f"  v_mul_u32_u24 v{AB}, v2, v{REC+3}")
    A(f"  v_lshrrev_b32 v{AB}, 16, v{AB}")
    A(f"  v_add3_u32 v{AB+1}, v2, v30, -1")
    A(f"  v_mul_u32_u24 v{AB+1}, v{AB+1}, v{REC+3}")
    A(f"  v_lshrrev_b32 v{AB+1}, 16, v{AB+1}")
    A(f"  v_sub_u32 v{AB+1}, v{AB+1}, v{AB}")
    A(f"  v_cmp_lt_u32 vcc, 0, v30")
    A(f"  v_mul_u32_u24 v{REC+1}, {RS}, v1")
    A(f"  v_add_u32 v{REC}, s{sWV}, v2")
    A(f"  v_cndmask_b32 v{AB+1}, 0, v{AB+1}, vcc")
    A(f"  v_lshl_or_b32 v{AB+1}, v{AB+1}, 8, v{AB}")
    A(f"  v_subrev_u32 v30, s{sWV}, v30")
    A(f"  s_lshl_b32 s44, s{sNT}, 7")
    A(f"  s_sub_u32 s44, 4, s44")
    A(f"  s_mov_b32 s45, {RS}")
    A(f"  v_mov_b32 v{AS}, {40*RS+S_-BD}")
    A(f"  v_add_u32 v{AS+1}, {S_-BD}, v{REC+1}")
    A("M_DESC:")
    A(f"  v_cmp_lt_i32 vcc, 0, v30")
    A(f"  s_cbranch_vccz M_DESCD")
    A(f"  s_mov_b64 exec, vcc")
    A(f"  v_mul_u32_u24 v{REC+2}, v{REC}, v{REC+3}")
    A(f"  v_lshrrev_b32 v{REC+2}, 16, v{REC+2}")
    A(f"  v_lshlrev_b32 v{DR}, 7, v{REC}")
    A(f"  v_mad_i32_i24 v{DR}, v{REC+2}, s44, v{DR}")
    A(f"  v_cmp_eq_u32 vcc, v{REC+2}, v{AB}")
    A(f"  v_mad_u32_u24 v{DR+1}, v{REC+2}, s45, v{AS}")
    A(f"  v_add_u32 v{DR}, {DESC}, v{DR}")
    A(f"  v_cndmask_b32 v{DR+1}, v{DR+1}, v{AS+1}, vcc")
    A(f"  v_lshl_or_b32 v{DR+1}, v{DR+1}, 16, v{REC+1}")
    A(f"  ds_write_b32 v{DR}, v{DR+1}")
    A(f"  v_add_u32 v{REC}, 8, v{REC}")
    A(f"  v_add_u32 v30, -8, v30")
    A(f"  s_branch M_DESC")
    A("M_DESCD:")
    A(f"  s_mov_b64 exec, -1")
    A(f"  s_cmp_lg_u32 s{sWV}, 0")
    A(f"  s_cbranch_scc1 M_NODEG")
    A(f"  v_add_u32 v3, {DEG-CNT}, v3")
    A(f"  ds_add_u32 v3, v17")
    A(f"  ds_write_b32 v3, v{AB+1} offset:{CAR-DEG}")
    A("M_NODEG:")
    A("  s_waitcnt lgkmcnt(0)")
    for k in range(16):
        r=RC+2*k
        A(f"  s_mov_b64 exec, s[{sMK+2*k}:{sMK+2*k+1}]")
        A(f"  v_lshl_add_u32 v{r+1}, v{RK+k}, 2, v{r+1}")
        A(f"  ds_write_b32 v{r+1}, v{r}")
    A(f"  s_mov_b64 exec, -1")
    A(f"  s_or_b32 s42, s{sRB}, s{sMODE}")
    A(f"  s_cmp_lg_u32 s42, 0")
    A(f"  s_cbranch_scc1 M_NOW")
    for i in range(16):
        A(f"  ds_read_b128 {q4('a',W+4*i)}, v{CIN+1} offset:{(i>>1)*8192+4096+(i&1)*1024}")
    A("M_NOW:")
    A(f"  s_mov_b32 s{sCNT}, s{sNT}")
    A(f"  v_mov_b32 v{CHK}, 0")
    A(f"  v_mov_b32 v{CHK+1}, 0")
    A(f"  v_mov_b32 v{N_}, 0")
    A(f"  v_mov_b32 v{N_+1}, 0")
    A(f"  v_mov_b32 v{DN}, 1.0")
    A(f"  v_mov_b32 v{DN+1}, 1.0")
    A(f"  v_add_u32 v{AS}, {40*RS+S_-BD}, v{L4}")
    A(f"  v_add_u32 v{AS+1}, {40*RS+S_-BD}, v{L4}")
    A(f"  v_mov_b32 v{A5[0]+3}, 0")
    A(f"  v_mov_b32 v{A5[1]+3}, 0")
    A(f"  s_and_b32 s40, s{sWV}, 1")
    A(f"  s_lshl_b32 s45, s40, 6")
    A(f"  s_lshl_b32 s40, s40, 13")
    A(f"  s_add_u32 s40, s40, {WS_W2}")
    A(f"  s_add_u32 s41, s40, 4096")
    A(f"  v_lshrrev_b32 v30, 4, v1")
    A(f"  v_lshlrev_b32 v30, 3, v30")
    A("  s_waitcnt lgkmcnt(0)")
    A("  s_barrier")
    ts(L,'bar3')
    A(f"  ds_read_b128 {q4('v',REC)}, v{P128}")
    A(f"  ds_read_b128 {q4('v',D[0])}, v{P128} offset:32")
    A(f"  ds_read_b128 {q4('v',D[0]+4)}, v{P128} offset:64")
    A(f"  ds_read_b32 v{A5[0]}, v{P32}")
    A(f"  ds_read_b64 {v2(DR)}, v{PD}")
    A("  s_waitcnt lgkmcnt(4)")
    L+=dma(0)
    A("  s_waitcnt lgkmcnt(3)")
    L+=dma(1,D[0])
    for cc in range(2):
        for s in range(4): A(f"  buffer_load_dwordx4 {q4('a',W2+16*cc+4*s)}, v{CIN+1}, s[{sWS}:{sWS+3}], s{40+cc} offen offset:{1024*s}")
    for cc in range(2): A(f"  buffer_load_dwordx2 {v2(B2+2*cc)}, v30, s[{sB2}:{sB2+3}], s45 offen offset:{32*cc}")
    A(f"  s_cmp_eq_u32 s{sCNT}, 0")
    A(f"  s_cbranch_scc1 M_DONE")
    A("  s_waitcnt lgkmcnt(0)")
    L+=[sdwa_add(AB,DR,L4,0), sdwa_add(AB+1,DR+1,L4,0)]
    L+=a5mask(0)
    Q=DSQ()
    L+=bd_reads(Q,0)+bd_reads(Q,1)
    A("  s_waitcnt vmcnt(14)")
    for s in range(4): A(f"  ds_read_b128 {q4('a',X[0]+4*s)}, v{XA+s}")
    A("  s_waitcnt lgkmcnt(0)")
    L+=dma(0,D[0]+4)
    L+=mfmas(D[0],0,0)
    ts(L,'loop')
    A("  s_nop 7"); A("  s_nop 3")
    A(f"  s_cmp_lg_u32 s{sMODE}, 0")
    A(f"  s_cbranch_scc1 M_LOOPS")
    L=fix(L)
    L+=mainloop(False)
    L+=mainloop(True)
    E=[]; A=E.append
    A("M_DONE:")
    A(f"  v_add_f32 v{CHK}, v{CHK}, v{CHK+1}")
    A(f"  v_mov_b32 v2, 1")
    A(f"  v_mov_b32 v31, {OVF}")
    A(f"  v_cmp_ngt_f32 vcc, s{sTH}, v{CHK}")
    A(f"  s_mov_b64 exec, vcc")
    A(f"  ds_write_b32 v31, v2")
    A(f"  s_mov_b64 exec, -1")
    A(f"  v_and_b32 v30, 15, v1")
    A(f"  s_lshr_b32 s41, s{sWV}, 1")
    A(f"  s_lshl_b32 s41, s41, 4")
    A(f"  v_add_u32 v30, s41, v30")
    A(f"  v_lshlrev_b32 v2, 2, v30")
    A(f"  v_add_u32 v2, {DEG}, v2")
    A(f"  ds_read_b32 v{DR}, v2 offset:{CAR-DEG}")
    A(f"  ds_read_b32 v2, v2")
    A(f"  v_lshrrev_b32 v17, 4, v1")
    A(f"  v_lshlrev_b32 v{CIN}, 5, v17")
    A(f"  v_add_u32 v{CIN}, {S_}, v{CIN}")
    A(f"  s_mov_b32 s45, {RS}")
    A(f"  v_mad_u32_u24 v3, v30, s45, v{CIN}")
    A(f"  v_add_u32 v{CIN}, {40*RS}, v{CIN}")
    A("  s_waitcnt lgkmcnt(0)")
    A(f"  v_and_b32 v{AB}, 0xff, v{DR}")
    A(f"  v_lshrrev_b32 v{DR}, 8, v{DR}")
    A(f"  v_mad_u32_u24 v{AB}, v{AB}, s45, v{CIN}")
    A("  s_waitcnt vmcnt(0)")
    ts(E,'done')
    A("  s_barrier")
    ts(E,'bar4')
    A(f"  s_cmp_ge_u32 s{sWV}, 6")
    A(f"  s_cbranch_scc1 M_EPD")
    for s in range(4):
        A(f"  ds_read_b128 {q4('v',D[0]+8*s)}, v3 offset:{128*s}")
        A(f"  ds_read_b128 {q4('v',D[0]+8*s+4)}, v3 offset:{128*s+16}")
    A("M_CARRY:")
    A(f"  v_cmp_lt_i32 vcc, 0, v{DR}")
    A(f"  s_cbranch_vccz M_CARRYD")
    A(f"  v_add_u32 v{AB}, {RS}, v{AB}")
    A(f"  v_add_u32 v{DR}, -1, v{DR}")
    A(f"  v_cndmask_b32 v{AB+1}, v{CIN}, v{AB}, vcc")
    for hf in range(2):
        for s in range(2):
            A(f"  ds_read_b128 {q4('v',T+8*s)}, v{AB+1} offset:{128*(2*hf+s)}")
            A(f"  ds_read_b128 {q4('v',T+8*s+4)}, v{AB+1} offset:{128*(2*hf+s)+16}")
        for i in range(8):
            if i%2==0: A(f"  s_waitcnt lgkmcnt({3-i//2})")
            A(pk('add',D[0]+16*hf+2*i,D[0]+16*hf+2*i,T+2*i))
    A(f"  s_branch M_CARRY")
    A("M_CARRYD:")
    A(f"  s_cmp_lg_u32 s{sMORE}, 0")
    A(f"  s_cbranch_scc1 M_FOLD")
    A(f"  s_mov_b32 s40, 0xffff0000")
    A("  s_waitcnt lgkmcnt(0)")
    ACC=[18,22]
    for s in range(4):
        b=D[0]+8*s; hi=T+8*(s&1); lo=hi+4
        for j in range(4): A(f"  v_cvt_pk_bf16_f32 v{hi+j}, v{b+2*j}, v{b+2*j+1}")
        for cc in range(2):
            c="0" if s==0 else q4('v',ACC[cc])
            A(f"  v_mfma_f32_16x16x32_bf16 {q4('v',ACC[cc])}, {q4('a',W2+16*cc+4*s)}, {q4('v',hi)}, {c}")
        for j in range(4):
            A(f"  v_lshlrev_b32 v{REC}, 16, v{hi+j}")
            A(f"  v_and_b32 v{REC+1}, s40, v{hi+j}")
            A(f"  v_sub_f32 v{b+2*j}, v{b+2*j}, v{REC}")
            A(f"  v_sub_f32 v{b+2*j+1}, v{b+2*j+1}, v{REC+1}")
        for j in range(4): A(f"  v_cvt_pk_bf16_f32 v{lo+j}, v{b+2*j}, v{b+2*j+1}")
        for cc in range(2):
            A(f"  v_mfma_f32_16x16x32_bf16 {q4('v',ACC[cc])}, {q4('a',W2+16*cc+4*s)}, {q4('v',lo)}, {q4('v',ACC[cc])}")
    A(f"  v_cvt_f32_u32 v2, v2")
    for cc in range(2):
        for j in range(2):
            A(f"  v_lshlrev_b32 v{D[0]+4*cc+2*j}, 16, v{B2+2*cc+j}")
            A(f"  v_and_b32 v{D[0]+4*cc+2*j+1}, s40, v{B2+2*cc+j}")
    for i in range(8): A(f"  v_mul_f32 v{D[0]+i}, v{D[0]+i}, v2")
    A(f"  s_mov_b32 s42, 0xbf317218")
    A(f"  v_add_u32 v3, s{sN0}, v30")
    A(f"  v_lshlrev_b32 v3, 7, v3")
    A(f"  v_lshl_add_u32 v3, v17, 3, v3")
    A(f"  s_and_b32 s43, s{sWV}, 1")
    A(f"  s_lshl_b32 s43, s43, 6")
    A(f"  v_cmp_gt_u32 vcc, s{sNN}, v30")
    A(f"  s_mov_b64 exec, vcc")
    for i in range(8): A(f"  v_fma_f32 v{D[0]+i}, v{18+i}, s42, v{D[0]+i}")
    for cc in range(2):
        for j in range(2): A(f"  v_cvt_pk_bf16_f32 v{T+2*cc+j}, v{D[0]+4*cc+2*j}, v{D[0]+4*cc+2*j+1}")
        A(f"  buffer_store_dwordx2 {v2(T+2*cc)}, v3, s[{sOUT}:{sOUT+3}], s43 offen offset:{32*cc}")
    A(f"  v_mul_f32 v2, 0, v18")
    for i in range(1,8): A(f"  v_fma_f32 v2, v{18+i}, 0, v2")
    A(f"  v_cmp_u_f32 vcc, v2, v2")
    A(f"  v_mov_b32 v2, 1")
    A(f"  s_mov_b64 exec, vcc")
    A(f"  ds_write_b32 v31, v2")
    A(f"  s_mov_b64 exec, -1")
    A("M_EPD:")
    A(f"  s_cmp_lg_u32 s{sMORE}, 0")
    A(f"  s_cbranch_scc1 M_NEXT")
    A(f"  s_cmp_lg_u32 s{sMODE}, 0")
    A(f"  s_cbranch_scc1 M_EXIT")
    A("  s_waitcnt lgkmcnt(0)")
    A("  s_barrier")
    A(f"  ds_read_b32 v2, v31")
    A("  s_waitcnt lgkmcnt(0)")
    A(f"  v_readfirstlane_b32 s40, v2")
    A(f"  s_cmp_lg_u32 s40, 0")
    A(f"  s_cbranch_scc1 M_RESTART")
    ts_store(E, 0x600000, f"s{sWV}")
    A("M_EXIT:")
    A("  s_endpgm")
    A("M_RESTART:")
    A(f"  s_mov_b32 s{sMODE}, 1")
    A(f"  s_mov_b32 s{sRB}, 0")
    A(f"  v_lshlrev_b32 v3, 4, v0")
    for i in range(4): A(f"  v_mov_b32 v{T+i}, 0")
    fill(E, S_, 41*RS, T)
    fill(E, DEG, 256, T)
    A("  s_branch M_HEAD")
    A("M_FOLD:")
    A(f"  s_bitcmp1_b32 s{sWV}, 0")
    A(f"  s_cbranch_scc1 M_NEXT")
    A(f"  v_cmp_gt_u32 vcc, 40, v30")
    A("  s_waitcnt lgkmcnt(0)")
    A(f"  s_mov_b64 exec, vcc")
    for s in range(4):
        A(f"  ds_write_b128 v3, {q4('v',D[0]+8*s)} offset:{128*s}")
        A(f"  ds_write_b128 v3, {q4('v',D[0]+8*s+4)} offset:{128*s+16}")
    A(f"  s_mov_b64 exec, -1")
    A("M_NEXT:")
    A("  s_waitcnt lgkmcnt(0)")
    A("  s_barrier")
    A(f"  s_add_u32 s{sRB}, s{sRB}, {CAP}")
    A("M_HEAD:")
    round_head(E,False)
    A("  s_branch M_COUNT")
    L+=fix(E)
    return L
```

```python
from asmlib import *
WS_REC=0; WS_OFF=0x500000; WS_W1A=0x580000; WS_W1B=0x584000; WS_W2=0x588000; WS_SIZE=0x700000
LOG2E_BITS=0x3FB8AA3B
def srd(L, d, b, size):
    L += [f"  s_mov_b32 s{d}, s{b}", f"  s_mov_b32 s{d+1}, s{b+1}", f"  s_mov_b32 s{d+2}, {size}", f"  s_mov_b32 s{d+3}, 0x00020000"]
def scan64(L, v, op='v_add_u32_dpp'):
    for sh in (1,2,4,8):
        L.append(f"  {op} v{v}, v{v}, v{v} row_shr:{sh} row_mask:0xf bank_mask:0xf bound_ctrl:0")
    L.append(f"  {op} v{v}, v{v}, v{v} row_bcast:15 row_mask:0xa bank_mask:0xf")
    L.append(f"  {op} v{v}, v{v}, v{v} row_bcast:31 row_mask:0xc bank_mask:0xf")
import os
TS=int(os.environ.get('TS','0'))
K1V=int(os.environ.get('K1V','0'))
def ts1(L,i,real=False):
    if not TS: return
    L.append(f"  s_memrealtime s[{84+2*i}:{85+2*i}]" if real else f"  s_memtime s[{84+2*i}:{85+2*i}]")
    L.append("  s_waitcnt lgkmcnt(0)")
def ts1_store(L):
    if not TS: return
    A=L.append
    A("  s_waitcnt vmcnt(0)")
    A("  s_memrealtime s[100:101]")
    A("  v_lshrrev_b32 v2, 6, v0")
    A("  v_readfirstlane_b32 s41, v2")
    A("  s_waitcnt lgkmcnt(0)")
    A(f"  s_lshl_b32 s40, s2, 4")
    A(f"  s_add_u32 s40, s40, s41")
    A(f"  s_lshl_b32 s40, s40, 6")
    A(f"  s_add_u32 s40, s40, 0x680000")
    A("  v_mov_b32 v2, 0")
    A("  s_mov_b64 exec, 1")
    for i in range(9):
        A(f"  v_mov_b32 v3, s{84+2*i}")
        A(f"  buffer_store_dword v3, v2, s[24:27], s40 offen offset:{4*i}")
K1_STAGE=2560
K1_LDS=K1_STAGE+20000
def kernel1():
    L=[]
    A=L.append
    A("part_kernel:")
    A("  s_cmp_ge_u32 s2, 262")
    A("  s_cbranch_scc1 P_EXIT")
    A("  s_cmp_ge_u32 s2, 256")
    A("  s_cbranch_scc1 P_PREP")
    A("  s_load_dwordx4 s[4:7], s[0:1], 8")
    A("  s_load_dwordx2 s[8:9], s[0:1], 24")
    A("  s_load_dwordx2 s[10:11], s[0:1], 80")
    A("  v_lshlrev_b32 v1, 2, v0")
    A("  v_mov_b32 v2, 0")
    A("  ds_write_b32 v1, v2")
    A("  v_lshlrev_b32 v1, 4, v0")
    A("  v_lshlrev_b32 v3, 3, v0")
    A("  s_mul_i32 s3, s2, 10000")
    A("  s_mul_i32 s28, s2, 5000")
    A("  s_mul_i32 s29, s2, 20000")
    A("  s_add_u32 s30, s29, 10000")
    A("  s_mov_b32 s31, 214749")
    A("  s_mov_b32 s32, 0xffff0000")
    A("  v_mov_b32 v2, 1")
    A("  v_cmp_gt_u32 vcc, 625, v0")
    A("  s_and_saveexec_b64 s[34:35], vcc")
    ts1(L,0,True); ts1(L,1)
    A("  s_waitcnt lgkmcnt(0)")
    srd(L,16,8,2560000)
    A("  buffer_load_dwordx4 v[8:11], v1, s[16:19], s3 offen")
    srd(L,12,6,2560000)
    A("  buffer_load_dwordx4 v[4:7], v1, s[12:15], s3 offen")
    srd(L,20,4,1280000)
    A("  buffer_load_dwordx2 v[12:13], v3, s[20:23], s28 offen")
    srd(L,24,10,WS_SIZE)
    if K1V&1:
        A("  s_load_dwordx2 s[44:45], s[0:1], 0")
        A("  s_load_dwordx2 s[46:47], s[0:1], 64")
        A("  s_load_dwordx4 s[48:51], s[0:1], 32")
        A("  s_load_dwordx2 s[52:53], s[0:1], 56")
        A("  v_cmp_gt_u32 vcc, 64, v0")
        A("  s_cbranch_vccz P_NOWARM")
        A("  s_lshr_b32 s36, s2, 3")
        A("  s_and_b32 s36, s36, 7")
        A("  s_mul_i32 s36, s36, 2560")
        A("  v_mul_u32_u24 v41, 20480, v0")
        A("  v_mov_b32 v42, 0")
        A("  s_waitcnt lgkmcnt(0)")
        srd(L,56,44,1280000)
        A("  buffer_load_dword v43, v41, s[56:59], s36 offen")
        srd(L,60,46,1280000)
        A("  buffer_load_dword v43, v41, s[60:63], s36 offen")
        srd(L,64,48,33024)
        A("  buffer_load_dword v43, v41, s[64:67], s36 offen")
        srd(L,68,50,256)
        A("  buffer_load_dword v43, v42, s[68:71], 0 offen")
        srd(L,72,52,128)
        A("  buffer_load_dword v43, v42, s[72:75], 0 offen")
        A(f"  s_mov_b32 s37, {WS_W1A}")
        A("  v_lshlrev_b32 v42, 10, v0")
        A("  buffer_load_dword v43, v42, s[24:27], s37 offen")
        A("  s_branch P_WARMD")
        A("P_NOWARM:")
        for i in range(6): A("  buffer_load_dword v43, v1, s[16:19], s3 offen")
        A("P_WARMD:")
    ts1(L,2)
    A("  s_barrier")
    A(f"  s_waitcnt vmcnt({2+(6 if K1V&1 else 0)})")
    ts1(L,3)
    for i in range(4):
        A(f"  v_mul_u32_u24 v{14+i}, s31, v{8+i}")
    for i in range(4):
        A(f"  v_lshrrev_b32 v{14+i}, 21, v{14+i}")
    for i in range(4):
        A(f"  v_and_b32 v{14+i}, 0x3fc, v{14+i}")
        A(f"  ds_add_rtn_u32 v{18+i}, v{14+i}, v2")
    A(f"  s_waitcnt vmcnt({6 if K1V&1 else 0})")
    ts1(L,4)
    A("  v_lshl_or_b32 v4, v12, 16, v4")
    A("  v_and_or_b32 v5, v12, s32, v5")
    A("  v_lshl_or_b32 v6, v13, 16, v6")
    A("  v_and_or_b32 v7, v13, s32, v7")
    A("  s_waitcnt lgkmcnt(0)")
    A("  s_barrier")
    A("  v_cmp_gt_u32 vcc, 64, v0")
    A("  s_cbranch_vccz P_NOSCAN")
    A("  ds_read_b128 v[24:27], v1")
    A("  s_lshl_b32 s33, s2, 10")
    A(f"  s_add_u32 s33, s33, {WS_OFF}")
    A("  s_waitcnt lgkmcnt(0)")
    A("  v_add_u32 v29, v24, v25")
    A("  v_add_u32 v30, v29, v26")
    A("  v_add_u32 v31, v30, v27")
    A("  v_mov_b32 v28, v31")
    scan64(L,28)
    A("  v_sub_u32 v32, v28, v31")
    A("  v_add_u32 v33, v32, v24")
    A("  v_add_u32 v34, v32, v29")
    A("  v_add_u32 v35, v32, v30")
    A(f"  v_mov_b32 v40, {K1_STAGE}")
    for i in range(4):
        A(f"  v_lshl_add_u32 v{36+i}, v{32+i}, 3, v40")
    A("  ds_write_b128 v1, v[36:39] offset:1024")
    for i in range(4):
        A(f"  v_lshl_or_b32 v{32+i}, v{24+i}, 16, v{32+i}")
    A("  buffer_store_dwordx4 v[32:35], v1, s[24:27], s33 offen")
    A("  s_waitcnt lgkmcnt(0)")
    A("P_NOSCAN:")
    A("  s_barrier")
    ts1(L,5)
    for i in range(4):
        A(f"  ds_read_b32 v{14+i}, v{14+i} offset:1024")
    for i in range(4):
        A(f"  s_waitcnt lgkmcnt({3-i})")
        A(f"  v_lshl_add_u32 v{14+i}, v{18+i}, 3, v{14+i}")
    for i in range(4):
        A(f"  ds_write2_b32 v{14+i}, v{4+i}, v{8+i} offset0:0 offset1:1")
    A("  s_waitcnt lgkmcnt(0)")
    A("  s_barrier")
    ts1(L,6)
    A(f"  ds_read_b128 v[4:7], v1 offset:{K1_STAGE}")
    A(f"  ds_read_b128 v[8:11], v1 offset:{K1_STAGE+10000}")
    A("  s_waitcnt lgkmcnt(1)")
    A("  buffer_store_dwordx4 v[4:7], v1, s[24:27], s29 offen")
    A("  s_waitcnt lgkmcnt(0)")
    A("  buffer_store_dwordx4 v[8:11], v1, s[24:27], s30 offen")
    ts1(L,7)
    ts1_store(L)
    A("P_EXIT:")
    A("  s_endpgm")
    A("P_PREP:")
    A("  s_load_dwordx2 s[4:5], s[0:1], 32")
    A("  s_load_dwordx2 s[6:7], s[0:1], 48")
    A("  s_load_dwordx2 s[10:11], s[0:1], 80")
    A("  v_cmp_gt_u32 vcc, 512, v0")
    A("  s_cbranch_vccz P_EXIT")
    A("  s_sub_u32 s3, s2, 256")
    A("  s_and_b32 s28, s3, 1")
    A("  s_lshl_b32 s28, s28, 9")
    A("  v_add_u32 v1, s28, v0")
    A("  s_lshr_b32 s29, s3, 1")
    A("  s_lshl_b32 s30, s29, 14")
    A(f"  s_add_u32 s30, s30, {WS_W1A}")
    A("  s_mov_b32 s31, 1.0")
    A("  s_cmp_eq_u32 s29, 0")
    A(f"  s_cselect_b32 s31, 0xBFB8AA3B, s31")
    A("  s_waitcnt lgkmcnt(0)")
    srd(L,24,10,WS_SIZE)
    srd(L,12,4,129*256)
    srd(L,16,6,128*128)
    A("  s_cmp_eq_u32 s29, 2")
    A("  s_cbranch_scc1 P_PREP2")
    A("  v_bfe_u32 v2, v1, 5, 1")
    A("  v_bfe_u32 v3, v1, 6, 2")
    A("  v_lshlrev_b32 v2, 13, v2")
    A("  v_lshl_add_u32 v2, v3, 11, v2")
    A("  v_lshrrev_b32 v3, 8, v1")
    A("  v_lshl_add_u32 v2, v3, 6, v2")
    A("  v_and_b32 v3, 31, v1")
    A("  v_lshl_add_u32 v2, v3, 1, v2")
    A("  s_lshl_b32 s32, s29, 14")
    for j in range(8):
        A(f"  buffer_load_ushort v{8+j}, v2, s[12:15], s32 offen offset:{256*j}")
    A("  s_branch P_PREP3")
    A("P_PREP2:")
    A("  v_bfe_u32 v2, v1, 4, 2")
    A("  v_bfe_u32 v3, v1, 6, 2")
    A("  v_lshlrev_b32 v2, 10, v2")
    A("  v_lshl_add_u32 v2, v3, 12, v2")
    A("  v_lshrrev_b32 v3, 8, v1")
    A("  v_lshl_add_u32 v2, v3, 5, v2")
    A("  v_and_b32 v3, 15, v1")
    A("  v_lshl_add_u32 v2, v3, 1, v2")
    for j in range(8):
        A(f"  buffer_load_ushort v{8+j}, v2, s[16:19], 0 offen offset:{128*j}")
    A("P_PREP3:")
    A("  v_lshlrev_b32 v1, 4, v1")
    A("  s_waitcnt vmcnt(0)")
    for j in range(8):
        A(f"  v_lshlrev_b32 v{8+j}, 16, v{8+j}")
    for j in range(8):
        A(f"  v_mul_f32 v{8+j}, s31, v{8+j}")
    for j in range(4):
        A(f"  v_cvt_pk_bf16_f32 v{4+j}, v{8+2*j}, v{9+2*j}")
    A("  buffer_store_dwordx4 v[4:7], v1, s[24:27], s30 offen")
    A("  s_endpgm")
    return fix(L)
```

```python
from asmlib import *
from k1 import *
import os
CAP=28
XB=0; BD=65536; RS=528; S_=BD+41*RS; DEG=S_+72*RS; CAR=DEG+256; OVF=CAR+256; CNT=OVF+16; MORE=CNT+256; GB=MORE+16
CAPS=12
SORT=(GB+256+127)//128*128; LMAX=16; SORTN=32*LMAX*32+128; DESC=SORT+SORTN; DESCN=(LMAX+2)*128; WST=DESC+DESCN; K2_LDS=WST+16384
assert CAPS*32+40<=32*LMAX
assert K2_LDS<=163840
Z0=BD+40*RS
DUMMY=(40*RS)|((40*RS+S_-BD)<<16)
XA=4; SW=8; OH=10; L4=12; P128=13; P32=14; PD=15; CHK=16; N_=18; DN=20; AA=22; R_=24; AB=26; AS=28
REC=32; A5=[36,40]; B5=[44,48,52,56]; D=[60,76]; T=92; B2=108; DR=112; CIN=114; DRR=[112,114]; ACC=[116,118,120,122]; NV=124
W=0; X=[64,80]; W2=96; NA=128
sX=4; sWS=8; sW1=12; sOUT=16; sB1=20; sB2=24
sN0=28; sNN=29; sWV=30; sRB=31; sMODE=32; sNT=33; sCNT=34; sMORE=35; s128=36; sM0=[37,38]; sTH=39; sBK=3; sFL=48; sLD=49; sWL=50; sCAP=51
sMK=52
NLOG2E=0xBFB8AA3B
TS=int(os.environ.get('TS','0'))
ALIGN=int(os.environ.get('ALIGN','0'))
EXP=int(os.environ.get('EXP','0'))
TSP=os.environ.get('TSP','start,bar1,bar2,bar3,loop,done,bar4').split(',')
def ts(L,name,real=False):
    if not TS: return
    if real: i=0
    elif name in TSP: i=1+TSP.index(name)
    else: return
    L.append(f"  s_memrealtime s[{84+2*i}:{85+2*i}]" if real else f"  s_memtime s[{84+2*i}:{85+2*i}]")
    L.append("  s_waitcnt lgkmcnt(0)")
def ts_store(L, base, wvs):
    if not TS: return
    A=L.append
    A("  s_memrealtime s[100:101]")
    A("  s_waitcnt lgkmcnt(0)")
    A(f"  s_lshl_b32 s40, s2, 4")
    A(f"  s_add_u32 s40, s40, {wvs}")
    A(f"  s_lshl_b32 s40, s40, 6")
    A(f"  s_add_u32 s40, s40, {base}")
    A("  v_mov_b32 v2, 0")
    A("  s_mov_b64 exec, 1")
    for i in range(9):
        A(f"  v_mov_b32 v3, s{84+2*i}")
        A(f"  buffer_store_dword v3, v2, s[{sWS}:{sWS+3}], s40 offen offset:{4*i}")
    A(f"  v_mov_b32 v3, s{sNT}")
    A(f"  buffer_store_dword v3, v2, s[{sWS}:{sWS+3}], s40 offen offset:36")
def q4(p,r): return f"{p}[{r}:{r+3}]"
def v2(r): return f"v[{r}:{r+1}]"
def pk(op,d,a,b,c=None):
    f=lambda r: r if isinstance(r,str) else v2(r)
    if c is None: return f"  v_pk_{op}_f32 {f(d)}, {f(a)}, {f(b)}"
    return f"  v_pk_{op}_f32 {f(d)}, {f(a)}, {f(b)}, {f(c)}"
def sdwa_add(d,a,b,w): return f"  v_add_u32_sdwa v{d}, v{a}, v{b} dst_sel:DWORD dst_unused:UNUSED_PAD src0_sel:WORD_{w} src1_sel:DWORD"
class DSQ:
    def __init__(s): s.q=[]; s.blk=None; s.nb=0
    def issue(s,tag): s.q.append((tag,s.blk))
    def begin(s): s.nb+=1; s.blk=s.nb
    def end(s): s.blk=None
    def wait(s,*tags):
        n=None
        for i,(t,b) in enumerate(s.q):
            if t in tags:
                m=sum(1 for (t2,b2) in s.q[i+1:] if b2 is None or b2==b)
                n=m if n is None else min(n,m)
        if n is None: return []
        n=min(n,15)
        keep=[]
        for i,(t,b) in enumerate(s.q):
            m=sum(1 for (t2,b2) in s.q[i+1:] if b2 is None or b2==b)
            if m<n: keep.append((t,b))
        s.q=keep
        return [f"  s_waitcnt lgkmcnt({n})"]
def chain(Dc):
    ins=[pk('add',AA,T,"1.0")+" op_sel_hi:[1,0]", pk('fma',N_,Dc,T+2,Dc), pk('fma',DN,AA,T+2,AA), pk('fma',N_,Dc+2,AA,N_)]
    for j in range(2,8):
        ins+=[pk('fma',AA,Dc+2*j,DN,N_), pk('fma',DN,DN,T+2*j,DN), pk('fma',N_,N_,T+2*j,AA)]
    return ins
def chain_safe(Dc):
    ins=[]
    for j in range(8): ins.append(pk('add',T+2*j,T+2*j,"1.0")+" op_sel_hi:[1,0]")
    for i in range(16): ins.append(f"  v_rcp_f32 v{T+i}, v{T+i}")
    ins.append(pk('mul',N_,Dc,T))
    for j in range(1,8): ins.append(pk('fma',N_,Dc+2*j,T+2*j,N_))
    return ins
def mfmas(Dn_,tn,pp):
    ms=[f"  v_mfma_f32_32x32x16_bf16 v[{Dn_}:{Dn_+15}], {q4('v',A5[pp])}, {q4('v',B5[tn])}, 0"]
    for s in range(4):
        ms.append(f"  v_mfma_f32_32x32x16_bf16 v[{Dn_}:{Dn_+15}], {q4('a',X[pp]+4*s)}, {q4('a',W+16*tn+4*s)}, v[{Dn_}:{Dn_+15}]")
    return ms
def bd_reads(Q,tt):
    Q.issue(f'b5_{tt}'); Q.issue(f'b5_{tt}')
    return [f"  ds_read_b32 v{B5[tt]+1}, v{AB} offset:{128*tt}", f"  ds_read_b32 v{B5[tt]+2}, v{AB+1} offset:{128*tt}"]
def cin_reads(Q,tt):
    Q.issue('cin'); Q.issue('cin')
    return [f"  ds_read_b32 v{CIN}, v{AS} offset:{128*tt}", f"  ds_read_b32 v{CIN+1}, v{AS+1} offset:{128*tt}"]
def s_writes(Q,tt):
    Q.issue('wr'); Q.issue('wr')
    return [f"  ds_write_b32 v{AS}, v{R_} offset:{128*tt}", f"  ds_write_b32 v{AS+1}, v{R_+1} offset:{128*tt}"]
def dma(buf, rec=REC):
    out=[]
    for s in range(4):
        out.append(f"  s_mov_b32 m0, s{sM0[buf]}" if s==0 else "  s_add_u32 m0, m0, 1024")
        out.append(f"  v_mad_u32_u16 v{rec+s}, v{rec+s}, s{s128}, v{SW+(s&1)}")
        out.append(f"  buffer_load_dwordx4 v{rec+s}, s[{sX}:{sX+3}], 0 offen lds")
    return out
def a5mask(pp):
    return [f"  v_cmp_le_i16 vcc, 0, v{A5[pp]}",
            f"  v_cndmask_b32 v{A5[pp]+1}, 0, v{OH}, vcc", f"  v_cndmask_b32 v{A5[pp]+2}, 0, v{OH+1}, vcc"]
def fin_ops(Q,safe,tt):
    out=[]
    if not safe:
        out.append(pk('add',CHK,CHK,DN))
        out+=Q.wait('cin')
        out.append(pk('fma',R_,N_,R_,CIN))
    else:
        out+=Q.wait('cin')
        out.append(pk('add',R_,N_,CIN))
    return out+s_writes(Q,tt)
def tile(Q,p,safe):
    q=1-p; out=[]
    for t in range(4):
        Dc=D[t&1]; Dn_=D[(t+1)&1]; tn=(t+1)%4; pp=p if t<3 else q
        tprev=(t+3)%4
        tr=[f"  v_exp_f32 v{T+i}, v{Dc+i}" for i in range(16)]
        if not safe: tr+=[f"  v_rcp_f32 v{R_}, v{DN}", f"  v_rcp_f32 v{R_+1}, v{DN+1}"]
        else: tr+=["  s_nop 0","  s_nop 0"]
        ms=mfmas(Dn_,tn,pp)
        side={}
        def at(pos,f): side.setdefault(pos,[]).append(f)
        def rd(tag,txt):
            def f():
                Q.issue(tag); return [txt]
            return f
        at(2,lambda: bd_reads(Q,(t+2)%4))
        at(3,lambda: cin_reads(Q,tprev))
        if t==0:
            at(5,lambda: ["  s_waitcnt vmcnt(4)"])
            for s,pos in enumerate((5,6,8,9)):
                at(pos,rd('x',f"  ds_read_b128 {q4('a',X[q]+4*s)}, v{XA+s} offset:{4096*q}"))
            at(11,rd('rec',f"  ds_read_b128 {q4('v',REC)}, v{P128} offset:{(3+p)*32}"))
            at(12,rd('a5',f"  ds_read_b32 v{A5[q]}, v{P32} offset:{(1+p)*32}"))
        if t==1:
            d=dma(q)
            at(5,lambda: Q.wait('rec','x')+d[0:3])
            at(6,lambda: d[3:6]); at(8,lambda: d[6:9]); at(9,lambda: d[9:12])
            m=a5mask(q)
            at(11,lambda: Q.wait('a5')+[m[0]])
            at(12,lambda: Q.wait('desc')+[sdwa_add(AB,DR,L4,0), sdwa_add(AB+1,DR+1,L4,0)])
            at(14,lambda: [m[1],m[2]])
        if t==3 and p==1:
            at(5,lambda: [f"  v_add_u32 v{P128}, 64, v{P128}", f"  v_add_u32 v{P32}, 64, v{P32}", f"  v_add_u32 v{PD}, 256, v{PD}"])
        k=0
        for i,x in enumerate(tr):
            if k<5 and i==1+3*k:
                if k==0: out+=Q.wait(f'b5_{tn}')
                if k==1 and t==3: out+=Q.wait('x')
                out.append(ms[k]); k+=1
            for f in side.get(i,[]): out+=f()
            out.append(x)
        out+=fin_ops(Q,safe,tprev)
        if t==0:
            out+=[sdwa_add(AS,DR,L4,1), sdwa_add(AS+1,DR+1,L4,1)]
            Q.issue('desc'); out.append(f"  ds_read_b64 {v2(DR)}, v{PD} offset:{(1+p)*128}")
        out+= chain_safe(Dc) if safe else chain(Dc)
    return out
OOL=[]
def flush(Q,dr):
    out=[sdwa_add(AS,dr,L4,1), sdwa_add(AS+1,dr+1,L4,1)]
    for t in range(4):
        Q.issue('wr'); Q.issue('wr')
        out+=[f"  ds_write_b32 v{AS}, v{ACC[t]} offset:{128*t}", f"  ds_write_b32 v{AS+1}, v{ACC[t]+1} offset:{128*t}"]
    return out
def w2_loads():
    out=[f"  v_lshlrev_b32 v{AS}, 4, v1", f"  v_lshrrev_b32 v{AS+1}, 4, v1", f"  s_and_b32 s40, s{sWV}, 1", f"  v_lshlrev_b32 v{AS+1}, 3, v{AS+1}",
         f"  s_lshl_b32 s45, s40, 6", f"  s_lshl_b32 s40, s40, 13", f"  s_add_u32 s40, s40, {WS_W2}", f"  s_add_u32 s41, s40, 4096"]
    for cc in range(2):
        for s in range(4): out.append(f"  buffer_load_dwordx4 {q4('a',W2+16*cc+4*s)}, v{AS}, s[{sWS}:{sWS+3}], s{40+cc} offen offset:{1024*s}")
    for cc in range(2): out.append(f"  buffer_load_dwordx2 {v2(B2+2*cc)}, v{AS+1}, s[{sB2}:{sB2+3}], s45 offen offset:{32*cc}")
    out.append(f"  s_mov_b32 s{sLD}, 1")
    return out
def ftile(Q,p,ool):
    q=1-p; out=[]
    for t in range(4):
        Dc=D[t&1]; Dn_=D[(t+1)&1]; tn=(t+1)%4; pp=p if t<3 else q
        tprev=(t+3)%4
        tr=[f"  v_exp_f32 v{T+i}, v{Dc+i}" for i in range(16)]
        tr+=[f"  v_rcp_f32 v{R_}, v{DN}", f"  v_rcp_f32 v{R_+1}, v{DN+1}"]
        ms=mfmas(Dn_,tn,pp)
        side={}
        def at(pos,f): side.setdefault(pos,[]).append(f)
        def rd(tag,txt):
            def f():
                Q.issue(tag); return [txt]
            return f
        if t==0:
            at(2,lambda: ["  s_waitcnt vmcnt(4)"])
            for s,pos in enumerate((3,5,6,8)):
                at(pos,rd('x',f"  ds_read_b128 {q4('a',X[q]+4*s)}, v{XA+s} offset:{4096*q}"))
            at(9,rd('rec',f"  ds_read_b128 {q4('v',REC)}, v{P128} offset:{(3+p)*32}"))
            at(11,rd('a5',f"  ds_read_b32 v{A5[q]}, v{P32} offset:{(1+p)*32}"))
            if p==1:
                at(12,lambda: [f"  s_cmp_eq_u32 s{sLD}, 0"])
                at(14,lambda: [f"  s_cbranch_scc1 M_W2", "M_W2R:"])
                ool+=["M_W2:"]+w2_loads()+["  s_branch M_W2R"]
            at(15,lambda: [f"  s_bitcmp1_b32 s{sFL}, 0"])
        if t==1:
            d=dma(q)
            at(2,lambda: Q.wait('rec','x'))
            at(3,lambda: d[0:2]); at(4,lambda: d[2:3]); at(5,lambda: d[3:5]); at(6,lambda: d[5:6])
            at(8,lambda: d[6:8]); at(9,lambda: d[8:9]); at(11,lambda: d[9:11]); at(12,lambda: d[11:12])
        if t==2:
            def c1():
                w=Q.wait('desc')
                Q.begin()
                b=[f"M_C1_{p}:", sdwa_add(AB,DRR[q],L4,0), sdwa_add(AB+1,DRR[q]+1,L4,0)]
                for tt in range(4): b+=bd_reads(Q,tt)
                Q.end()
                ool.extend(b+[f"  s_branch M_C1R_{p}"])
                return w+[f"  s_cbranch_scc1 M_C1_{p}", f"M_C1R_{p}:"]
            at(1,lambda: [f"  s_bitcmp1_b32 s{sFL}, 1"])
            at(2,c1)
            m=a5mask(q)
            at(5,lambda: Q.wait('a5')+[m[0]])
            at(8,lambda: [m[1]]); at(9,lambda: [m[2]])
        if t==3:
            at(3,lambda: [f"  s_lshr_b32 s{sFL}, s{sFL}, 1"])
            at(5,lambda: [f"  s_sub_u32 s{sCNT}, s{sCNT}, 1"])
            if p==1:
                at(6,lambda: [f"  v_add_u32 v{P128}, 64, v{P128}"])
                at(8,lambda: [f"  v_add_u32 v{P32}, 64, v{P32}"])
                at(9,lambda: [f"  v_add_u32 v{PD}, 256, v{PD}"])
            at(11,lambda: [f"  s_cmp_eq_u32 s{sCNT}, 0"])
        k=0
        for i,x in enumerate(tr):
            if k<5 and i==1+3*k:
                if k==0: out+=Q.wait(f'b5_{tn}')
                if k==1 and t==3: out+=Q.wait('x')
                out.append(ms[k]); k+=1
            for f in side.get(i,[]): out+=f()
            out.append(x)
        out.append(pk('add',CHK,CHK,DN))
        out.append(pk('fma',ACC[tprev],N_,R_,ACC[tprev]))
        ch=chain(Dc)
        if t==0:
            Q.begin()
            b=[f"M_C2_{p}:", f"  v_cmp_eq_u32 vcc, v{DRR[q]}, v{DRR[p]}", f"  v_cmp_eq_u32_e64 s[40:41], v{DRR[q]+1}, v{DRR[p]+1}"]+flush(Q,DRR[q])
            Q.end()
            for tt in range(4):
                b+=[f"  v_cndmask_b32 v{ACC[tt]}, 0, v{ACC[tt]}, vcc", f"  v_cndmask_b32_e64 v{ACC[tt]+1}, 0, v{ACC[tt]+1}, s[40:41]"]
            ool.extend(b+[f"  s_branch M_C2R_{p}"])
            out+=[f"  s_cbranch_scc1 M_C2_{p}", f"M_C2R_{p}:"]
            Q.issue('desc')
            ch=ch[:2]+[f"  ds_read_b64 {v2(DRR[q])}, v{PD} offset:{(1+p)*128}"]+ch[2:]
        out+=ch
    return out
def ffinish(p):
    Q=DSQ()
    return [f"  v_rcp_f32 v{R_}, v{DN}", f"  v_rcp_f32 v{R_+1}, v{DN+1}", pk('add',CHK,CHK,DN), pk('fma',ACC[3],N_,R_,ACC[3])]+flush(Q,DRR[p])
def fastloop():
    Q=DSQ()
    ftile(Q,0,[]); ftile(Q,1,[])
    ool=[]
    b0=ftile(Q,0,ool); b1=ftile(Q,1,ool)
    L=b0+["  s_cbranch_scc1 M_FFIN0"]+b1+["  s_cbranch_scc0 M_LOOPF"]
    if EXP&2: L=[l for l in L if not l.strip().startswith(('ds_','s_waitcnt'))]
    if EXP&4: L=[l for l in L if not l.strip().startswith(('buffer_','s_waitcnt vm','s_mov_b32 m0','s_add_u32 m0'))]
    if EXP&8: L=[l for l in L if not l.strip().startswith(('v_mad','v_add_u32','v_cmp','v_cnd'))]
    if EXP&512: L=[l for l in L if not l.strip().startswith(('s_cbranch_scc1 M_C1'))]
    if EXP&1024: L=[l for l in L if not l.strip().startswith(('s_cbranch_scc1 M_C2'))]
    if EXP&2048: L=[l for l in L if not l.strip().startswith(('s_bitcmp','s_cbranch_scc1 M_W2','s_cmp_eq_u32 s49','s_lshr'))]
    L=fix(L)
    if ALIGN==1: L=align8(L)
    fix(L+L, check_only=True, name='loopF')
    return [".p2align 6","M_LOOPF:"]+L+fix(ffinish(1))+["  s_branch M_DONE","M_FFIN0:"]+fix(ffinish(0))+["  s_branch M_DONE"]+fix(ool)
def finish(safe):
    Q=DSQ()
    out=cin_reads(Q,3)
    if not safe: out+=[f"  v_rcp_f32 v{R_}, v{DN}", f"  v_rcp_f32 v{R_+1}, v{DN+1}"]
    return out+fin_ops(Q,safe,3)
def isize(l):
    c=Ins(l)
    if c.kind=='none': return 0
    if c.kind in('mfma','ds','vmem'): return 8
    lit=any(re.match(r'^(0x[0-9a-f]+|\d+)$',o) and (int(o,0)>64) for o in c.ops)
    if c.kind=='salu':
        if c.mn.startswith(('s_waitcnt','s_nop','s_cbranch','s_branch')): return 4
        return 8 if lit else 4
    if c.mn.startswith(('v_pk_','v_mad_','v_fma')) or c.mn.endswith(('_e64','_sdwa')): return 8
    return 8 if lit else 4
def align8(L):
    out=[]; off=0
    for l in L:
        n=isize(l)
        if n==8 and off%8==4:
            done=False
            for i in range(len(out)-1,-1,-1):
                if isize(out[i])==8: break
                c=Ins(out[i])
                if c.kind=='valu':
                    out[i]=out[i].replace(c.mn,c.mn+'_e64',1); done=True; break
            if not done: out.append("  s_nop 0")
            off+=4
        out.append(l); off+=n
    return out
def mainloop(safe):
    tag='S' if safe else 'F'
    Q=DSQ()
    tile(Q,0,safe); tile(Q,1,safe)
    b0=tile(Q,0,safe); b1=tile(Q,1,safe)
    L=b0+[f"  s_sub_u32 s{sCNT}, s{sCNT}, 1", f"  s_cmp_eq_u32 s{sCNT}, 0", f"  s_cbranch_scc1 M_FIN{tag}"]
    L+=b1+[f"  s_sub_u32 s{sCNT}, s{sCNT}, 1", f"  s_cmp_lg_u32 s{sCNT}, 0", f"  s_cbranch_scc1 M_LOOP{tag}"]
    if EXP&2: L=[l for l in L if not l.strip().startswith(('ds_','s_waitcnt'))]
    if EXP&4: L=[l for l in L if not l.strip().startswith(('buffer_','s_waitcnt vm','s_mov_b32 m0','s_add_u32 m0'))]
    if EXP&16: L=[l for l in L if not (l.strip().startswith(('ds_read_b32','ds_write_b32')) and f', v{P32} ' not in l)]
    if EXP&32: L=[l for l in L if not l.strip().startswith(('ds_read_b128 a'))]
    if EXP&64: L=[l for l in L if not l.strip().startswith(('s_waitcnt lgkm'))]
    if EXP&128: L=[l for l in L if not l.strip().startswith(('ds_write_b32'))]
    if EXP&256: L=[l for l in L if 'sdwa' not in l]
    if EXP&8: L=[l for l in L if not l.strip().startswith(('v_mad','v_add_u32','v_cmp','v_cnd'))]
    L=fix(L)
    if ALIGN==1: L=align8(L)
    if ALIGN==2: L=align8([re.sub(r'v_exp_f32 ','v_exp_f32_e64 ',l) for l in L])
    fix(L+L, check_only=True, name='loop'+tag)
    L=[".p2align 6", f"M_LOOP{tag}:"]+L+[f"M_FIN{tag}:"]+fix(finish(safe))+["  s_branch M_DONE"]
    return L
def fill(L, base, nbytes, quad, tmp=2):
    n=nbytes//16; full=n//512; rem=n%512
    L.append(f"  v_add_u32 v{tmp}, {base}, v3")
    for i in range(full): L.append(f"  ds_write_b128 v{tmp}, {q4('v',quad)} offset:{8192*i}")
    if rem:
        L.append(f"  v_cmp_gt_u32 vcc, {rem}, v0")
        L.append(f"  s_mov_b64 exec, vcc")
        L.append(f"  ds_write_b128 v{tmp}, {q4('v',quad)} offset:{8192*full}")
        L.append(f"  s_mov_b64 exec, -1")
RC=D[0]; RK=T; OFS=18; REM=22; VOF=26
def round_head(L, first):
    A=L.append
    A(f"  v_lshrrev_b32 v2, 3, v0")
    A(f"  v_lshlrev_b32 v30, 10, v2")
    A(f"  s_lshl_b32 s40, s{sBK}, 2")
    A(f"  s_add_u32 s40, s40, {WS_OFF}")
    for j in range(4):
        A(f"  buffer_load_dword v{OFS+j}, v30, s[{sWS}:{sWS+3}], s40 offen")
        if j<3: A(f"  s_add_u32 s40, s40, 65536")
    if first:
        A(f"  v_lshrrev_b32 v31, 4, v1")
        A(f"  v_and_b32 v30, 7, v1")
        A(f"  v_xor_b32 v31, v31, v30")
        A(f"  v_lshlrev_b32 v{SW}, 4, v31")
        A(f"  v_xor_b32 v{SW+1}, 64, v{SW}")
        A(f"  v_bfe_u32 v30, v1, 3, 1")
        A(f"  v_bfe_u32 v31, v1, 4, 1")
        A(f"  v_lshl_or_b32 v30, v30, 1, v31")
        A(f"  v_lshrrev_b32 v17, 5, v1")
        A(f"  v_lshl_or_b32 v30, v17, 2, v30")
        A(f"  s_lshr_b32 s41, s{sWV}, 2")
        A(f"  s_lshl_b32 s42, s41, 5")
        A(f"  s_add_u32 s42, s42, s{sN0}")
        A(f"  v_add_u32 v{REC}, s42, v30")
        for s in range(1,4): A(f"  v_add_u32 v{REC+s}, {8*s}, v{REC}")
        L+=dma(0)
        A(f"  v_lshlrev_b32 v30, 4, v1")
        A(f"  s_and_b32 s43, s{sWV}, 3")
        A(f"  s_lshl_b32 s44, s43, 12")
        A(f"  s_add_u32 s44, s44, {WS_W1B}")
        for s in range(4): A(f"  buffer_load_dwordx4 {q4('a',X[1]+4*s)}, v30, s[{sWS}:{sWS+3}], s44 offen offset:{1024*s}")
        A(f"  s_lshl_b32 s40, s{sWV}, 11")
        A(f"  s_add_u32 s44, s40, {WST}")
        A(f"  s_add_u32 s40, s40, {WS_W1A}")
        A(f"  s_mov_b32 m0, s44")
        for j in range(2): A(f"  buffer_load_dwordx4 v30, s[{sWS}:{sWS+3}], s40 offen offset:{1024*j} lds")
        A(f"  v_and_b32 v31, 31, v1")
        A(f"  v_lshlrev_b32 v31, 1, v31")
        A(f"  s_lshl_b32 s44, s43, 6")
        A(f"  buffer_load_ushort v{DR}, v31, s[{sB1}:{sB1+3}], s44 offen")
        A(f"  s_mov_b32 s44, {128*256}")
        for t in range(4): A(f"  buffer_load_ushort v{B5[t]}, v31, s[{sW1}:{sW1+3}], s44 offen offset:{64*t}")
        ts(L,'iss1')
    A(f"  v_lshlrev_b32 v3, 4, v0")
    for i in range(4): A(f"  v_mov_b32 v{T+i}, 0")
    for i in range(4): A(f"  v_mov_b32 v{T+4+i}, 0x8000")
    for i in range(4): A(f"  v_mov_b32 v{T+8+i}, {DUMMY}")
    fill(L, SORT, SORTN, T+4)
    if first: fill(L, Z0, GB-Z0, T)
    else:
        fill(L, S_+41*RS, 31*RS, T)
        fill(L, CNT, GB-CNT, T)
    fill(L, DESC, DESCN, T+8)
    if first: ts(L,'fill')
    A(f"  v_lshrrev_b32 v2, 3, v0")
    A(f"  v_mul_u32_u24 v30, 20000, v2")
    A(f"  v_and_b32 v2, 7, v0")
    A(f"  v_lshl_add_u32 v30, v2, 4, v30")
    A(f"  v_lshlrev_b32 v2, 1, v2")
    A(f"  v_sub_u32 v31, s{sCAP}, v2")
    A(f"  v_add_u32 v2, s{sRB}, v2")
    A(f"  s_lshl_b32 s40, s{sRB}, 3")
    A(f"  v_mov_b32 v{CIN}, 0")
    for j in range(4):
        A(f"  s_waitcnt vmcnt({(15 if first else 0)+3-j})")
        A(f"  v_and_b32 v{VOF+j}, 0xffff, v{OFS+j}")
        A(f"  v_lshrrev_b32 v{REM+j}, 16, v{OFS+j}")
        A(f"  v_lshl_add_u32 v{VOF+j}, v{VOF+j}, 3, v30")
        A(f"  v_sub_u32 v{REM+j}, v{REM+j}, v2")
        A(f"  v_max_i32 v{CIN}, v{CIN}, v{REM+j}")
        A(f"  v_min_i32 v{REM+j}, v{REM+j}, v31")
        for u in range(2):
            for i in range(2):
                k=sMK+2*(4*j+2*u+i)
                A(f"  v_cmp_lt_i32_e64 s[{k}:{k+1}], {16*u+i}, v{REM+j}")
    if first: ts(L,'offs')
    A(f"  v_mov_b32 v2, 0x40000000")
    for j in range(4):
        for u in range(2):
            k=sMK+2*(4*j+2*u)
            A(f"  v_cndmask_b32_e64 v{30+u}, v2, v{VOF+j}, s[{k}:{k+1}]")
            A(f"  buffer_load_dwordx4 {q4('v',RC+8*j+4*u)}, v{30+u}, s[{sWS}:{sWS+3}], s40 offen offset:{128*u}")
        if j<3: A(f"  s_add_u32 s40, s40, {64*20000}")
    if first:
        ts(L,'iss2')
        A(f"  v_and_b32 v2, 31, v1")
        A(f"  v_and_b32 v30, 28, v2")
        A(f"  v_bfe_u32 v31, v2, 1, 1")
        A(f"  v_and_b32 v3, 1, v2")
        A(f"  v_lshl_or_b32 v31, v3, 1, v31")
        A(f"  v_or_b32 v30, v30, v31")
        A(f"  v_bfe_u32 v31, v30, 1, 3")
        A(f"  v_lshlrev_b32 v30, 7, v30")
        A(f"  v_add_u32 v30, s{sM0[0]}, v30")
        A(f"  v_lshlrev_b32 v{REC+2}, 2, v17")
        A(f"  v_xor_b32 v31, v31, v{REC+2}")
        for s in range(4):
            A(f"  v_xor_b32 v{XA+s}, {s}, v31")
            A(f"  v_lshl_add_u32 v{XA+s}, v{XA+s}, 4, v30")
        A(f"  s_waitcnt vmcnt({11+8})")
        for s in range(4): A(f"  ds_read_b128 {q4('a',X[0]+4*s)}, v{XA+s}")
        A(f"  v_bfe_u32 v30, v2, 2, 1")
        A(f"  v_lshl_or_b32 v30, v30, 1, v3")
        A(f"  v_lshlrev_b32 v31, 1, v17")
        A(f"  v_mov_b32 v{REC+2}, 0x3f803f80")
        A(f"  v_cmp_eq_u32 vcc, v30, v31")
        A(f"  v_cndmask_b32 v{OH}, 0, v{REC+2}, vcc")
        A(f"  v_add_u32 v31, 1, v31")
        A(f"  v_cmp_eq_u32 vcc, v30, v31")
        A(f"  v_cndmask_b32 v{OH+1}, 0, v{REC+2}, vcc")
        A(f"  s_mov_b32 s46, {NLOG2E}")
        A(f"  s_mul_i32 s47, s41, {32*RS}")
        A(f"  s_lshl_b32 s44, s43, 7")
        A(f"  s_add_u32 s47, s47, s44")
        A(f"  v_mul_u32_u24 v30, {4*RS}, v17")
        A(f"  v_add3_u32 v30, v30, v{L4}, s47")
        A(f"  s_waitcnt vmcnt(8) lgkmcnt(0)")
        ts(L,'bin')
        for s in range(4):
            c = "0" if s==0 else f"v[{T}:{T+15}]"
            A(f"  v_mfma_f32_32x32x16_bf16 v[{T}:{T+15}], {q4('a',X[0]+4*s)}, {q4('a',X[1]+4*s)}, {c}")
        A(f"  v_cmp_lt_u32 vcc, 31, v1")
        for t in range(4):
            r=B5[t]
            A(f"  v_lshlrev_b32 v{r}, 16, v{r}")
            A(f"  v_mul_f32 v{r}, s46, v{r}")
            A(f"  v_cvt_pk_bf16_f32 v{r+1}, 0, v{r}")
            A(f"  v_sub_f32 v{r}, v{r}, v{r+1}")
            A(f"  v_cvt_pk_bf16_f32 v{r}, 0, v{r}")
            A(f"  v_cndmask_b32 v{r}, v{r+1}, v{r}, vcc")
            A(f"  v_mov_b32 v{r+3}, 0")
        A(f"  v_lshlrev_b32 v{DR}, 16, v{DR}")
        A(f"  v_mul_f32 v{DR}, s46, v{DR}")
        for r in range(16):
            if r==4:
                A(f"  s_cmp_eq_u32 s41, 1")
                A(f"  s_cbranch_scc1 M_BDONE")
            A(f"  v_fma_f32 v{T+r}, v{T+r}, s46, v{DR}")
            A(f"  v_cvt_pk_bf16_f32 v{REC+(r&1)}, 0, v{T+r}")
            A(f"  v_sub_f32 v{REC+(r&1)}, v{T+r}, v{REC+(r&1)}")
            A(f"  v_cvt_pk_bf16_f32 v{T+r}, v{REC+(r&1)}, v{T+r}")
            A(f"  ds_write_b32 v30, v{T+r} offset:{(8*(r>>2)+(r&3))*RS}")
        A("M_BDONE:")
        ts(L,'bdone')
    else:
        A(f"  s_waitcnt vmcnt(0)")
def kernel2():
    L=[]; A=L.append
    A("main_kernel:")
    A("  s_cmp_ge_u32 s2, 256")
    A("  s_cbranch_scc1 M_EXIT")
    A("  s_load_dwordx2 s[52:53], s[0:1], 80")
    A("  s_load_dwordx2 s[54:55], s[0:1], 0")
    A("  s_load_dwordx4 s[40:43], s[0:1], 32")
    A("  s_load_dwordx4 s[44:47], s[0:1], 56")
    A("  v_and_b32 v1, 63, v0")
    A("  v_lshrrev_b32 v2, 6, v0")
    A(f"  v_readfirstlane_b32 s{sWV}, v2")
    A(f"  s_and_b32 s{sBK}, s2, 7")
    A(f"  s_lshl_b32 s{sBK}, s{sBK}, 5")
    A(f"  s_lshr_b32 s{sN0}, s2, 3")
    A(f"  s_or_b32 s{sBK}, s{sBK}, s{sN0}")
    A(f"  s_mul_i32 s{sN0}, s{sBK}, 625")
    A(f"  s_add_u32 s{sNN}, s{sN0}, 640")
    A(f"  s_add_u32 s{sN0}, s{sN0}, 15")
    A(f"  s_lshr_b32 s{sN0}, s{sN0}, 4")
    A(f"  s_lshr_b32 s{sNN}, s{sNN}, 4")
    A(f"  s_sub_u32 s{sNN}, s{sNN}, s{sN0}")
    A(f"  s_mov_b32 s{sRB}, 0")
    A(f"  s_mov_b32 s{sMODE}, 0")
    A(f"  s_mov_b32 s{s128}, 128")
    A(f"  s_mov_b32 s{sLD}, 0")
    A(f"  s_mov_b32 s{sWL}, 0")
    A(f"  s_mov_b32 s{sCAP}, {CAP}")
    A(f"  s_mov_b32 s{sTH}, 0x5f800000")
    A(f"  s_lshl_b32 s{sM0[0]}, s{sWV}, 13")
    A(f"  s_add_u32 s{sM0[1]}, s{sM0[0]}, 4096")
    A(f"  v_and_b32 v2, 31, v1")
    A(f"  v_lshlrev_b32 v{L4}, 2, v2")
    A(f"  v_add_u32 v{L4}, {BD}, v{L4}")
    ts(L,0,True); ts(L,'start')
    A("  s_waitcnt lgkmcnt(0)")
    srd(L,sWS,52,WS_SIZE); srd(L,sX,54,1280000); srd(L,sW1,40,129*256); srd(L,sB1,42,256); srd(L,sB2,44,128); srd(L,sOUT,46,1280000)
    round_head(L,True)
    A("M_COUNT:")
    A("  s_waitcnt lgkmcnt(0)")
    A("  s_barrier")
    ts(L,'bar1')
    A(f"  s_lshl_b32 s40, s{sN0}, 2")
    A(f"  s_sub_u32 s40, {CNT}, s40")
    A(f"  v_mov_b32 v2, 1")
    A(f"  v_mov_b32 v31, {MORE}")
    A(f"  v_cmp_lt_i32 vcc, s{sCAP}, v{CIN}")
    A(f"  s_mov_b64 exec, vcc")
    A(f"  ds_write_b32 v31, v2")
    for j in range(4):
        for u in range(2):
            A(f"  s_waitcnt vmcnt({7-(2*j+u)})")
            for i in range(2):
                k=4*j+2*u+i; r=RC+8*j+4*u+2*i
                A(f"  s_mov_b64 exec, s[{sMK+2*k}:{sMK+2*k+1}]")
                A(f"  v_lshl_add_u32 v{r+1}, v{r+1}, 2, s40")
                A(f"  ds_add_rtn_u32 v{RK+k}, v{r+1}, v2")
    A(f"  s_mov_b64 exec, -1")
    A(f"  s_lshl_b32 s41, s{sWV}, 2")
    A(f"  v_lshrrev_b32 v30, 4, v1")
    A(f"  v_add_u32 v{P128}, s41, v30")
    A(f"  v_bfe_u32 v30, v1, 3, 1")
    A(f"  v_lshlrev_b32 v{DR}, 4, v30")
    A(f"  v_add_u32 v{DR}, {SORT}, v{DR}")
    A(f"  v_bfe_u32 v30, v1, 2, 1")
    A(f"  v_and_b32 v31, 1, v1")
    A(f"  v_lshl_or_b32 v30, v30, 1, v31")
    A(f"  v_add_u32 v{P32}, s41, v30")
    A(f"  v_bfe_u32 v30, v1, 3, 2")
    A(f"  v_bfe_u32 v31, v1, 1, 1")
    A(f"  v_lshl_or_b32 v30, v31, 2, v30")
    A(f"  v_lshlrev_b32 v{DR+1}, 2, v30")
    A(f"  v_add_u32 v{DR+1}, {SORT}, v{DR+1}")
    A(f"  s_lshl_b32 s41, s{sWV}, 4")
    A(f"  s_add_u32 s41, s41, {DESC}")
    A(f"  v_lshrrev_b32 v30, 5, v1")
    A(f"  v_lshl_add_u32 v{PD}, v30, 3, s41")
    A(f"  v_lshlrev_b32 v3, 2, v1")
    A(f"  v_add_u32 v3, {CNT}, v3")
    A("  s_waitcnt lgkmcnt(0)")
    A("  s_barrier")
    ts(L,'bar2')
    A(f"  ds_read_b32 v17, v3")
    A(f"  v_mov_b32 v31, {MORE}")
    A(f"  ds_read_b32 v31, v31")
    A("  s_waitcnt lgkmcnt(1)")
    A(f"  v_add_u32 v30, 7, v17")
    A(f"  v_lshrrev_b32 v30, 3, v30")
    A(f"  v_mov_b32 v2, v30")
    scan64(L,2)
    A(f"  v_readlane_b32 s{sNT}, v2, 63")
    A(f"  v_sub_u32 v2, v2, v30")
    A(f"  v_mov_b32 v{REC}, {SORT}")
    A(f"  v_lshl_add_u32 v{REC}, v2, 5, v{REC}")
    A(f"  ds_write_b32 v3, v{REC} offset:{GB-CNT}")
    A(f"  s_add_u32 s{sNT}, s{sNT}, 31")
    A(f"  s_lshr_b32 s{sNT}, s{sNT}, 5")
    A(f"  s_max_u32 s42, s{sNT}, 1")
    A(f"  v_cvt_f32_u32 v{REC+3}, s42")
    A(f"  v_rcp_f32 v{REC+3}, v{REC+3}")
    A("  s_waitcnt lgkmcnt(0)")
    A(f"  v_readfirstlane_b32 s{sMORE}, v31")
    A(f"  s_cmp_gt_u32 s{sNT}, {LMAX}")
    A(f"  s_cselect_b32 s42, 1, s{sMORE}")
    A(f"  s_andn2_b32 s42, s42, s{sMODE}")
    A(f"  s_cbranch_scc1 M_SLOW")
    for k in range(16):
        r=RC+2*k
        A(f"  s_mov_b64 exec, s[{sMK+2*k}:{sMK+2*k+1}]")
        A(f"  ds_read_b32 v{r+1}, v{r+1} offset:{GB-CNT}")
    A(f"  s_mov_b64 exec, -1")
    A(f"  v_mul_f32 v{REC+3}, 0x47800000, v{REC+3}")
    A(f"  v_cvt_u32_f32 v{REC+3}, v{REC+3}")
    A(f"  v_add_u32 v{REC+3}, 1, v{REC+3}")
    A(f"  s_lshl_b32 s43, s{sNT}, 5")
    A(f"  v_mad_u32_u24 v{P128}, v{P128}, s43, v{DR}")
    A(f"  v_mad_u32_u24 v{P32}, v{P32}, s43, v{DR+1}")
    A(f"  v_mul_u32_u24 v{AB}, v2, v{REC+3}")
    A(f"  v_lshrrev_b32 v{AB}, 16, v{AB}")
    A(f"  v_add3_u32 v{AB+1}, v2, v30, -1")
    A(f"  v_mul_u32_u24 v{AB+1}, v{AB+1}, v{REC+3}")
    A(f"  v_lshrrev_b32 v{AB+1}, 16, v{AB+1}")
    A(f"  v_add_u32 v{DR}, v2, v30")
    A(f"  s_sub_u32 s44, 0, s{sNT}")
    A(f"  v_mad_i32_i24 v{DR}, v{AB+1}, s44, v{DR}")
    A(f"  v_lshrrev_b32 v{DR+1}, 2, v{AB+1}")
    A(f"  v_cmp_eq_u32_e64 s[44:45], s{sWV}, v{DR+1}")
    A(f"  v_cmp_lt_u32 vcc, 0, v30")
    A(f"  v_lshlrev_b32_e64 v{DR}, v{DR}, 1")
    A(f"  s_and_b64 s[44:45], s[44:45], vcc")
    A(f"  v_sub_u32 v{AB+1}, v{AB+1}, v{AB}")
    A(f"  v_cndmask_b32_e64 v{CIN}, 0, v{DR}, s[44:45]")
    scan64(L,CIN,'v_or_b32_dpp')
    A(f"  v_readlane_b32 s{sFL}, v{CIN}, 63")
    A(f"  v_mul_u32_u24 v{REC+1}, {RS}, v1")
    A(f"  v_add_u32 v{REC}, s{sWV}, v2")
    A(f"  v_cndmask_b32 v{AB+1}, 0, v{AB+1}, vcc")
    A(f"  v_lshl_or_b32 v{AB+1}, v{AB+1}, 8, v{AB}")
    A(f"  v_subrev_u32 v30, s{sWV}, v30")
    A(f"  s_lshl_b32 s44, s{sNT}, 7")
    A(f"  s_sub_u32 s44, 4, s44")
    A(f"  s_mov_b32 s45, {RS}")
    A(f"  v_mov_b32 v{AS}, {40*RS+S_-BD}")
    A(f"  v_add_u32 v{AS+1}, {S_-BD}, v{REC+1}")
    A("M_DESC:")
    A(f"  v_cmp_lt_i32 vcc, 0, v30")
    A(f"  s_cbranch_vccz M_DESCD")
    A(f"  s_mov_b64 exec, vcc")
    A(f"  v_mul_u32_u24 v{REC+2}, v{REC}, v{REC+3}")
    A(f"  v_lshrrev_b32 v{REC+2}, 16, v{REC+2}")
    A(f"  v_lshlrev_b32 v{DR}, 7, v{REC}")
    A(f"  v_mad_i32_i24 v{DR}, v{REC+2}, s44, v{DR}")
    A(f"  v_cmp_eq_u32 vcc, v{REC+2}, v{AB}")
    A(f"  v_mad_u32_u24 v{DR+1}, v{REC+2}, s45, v{AS}")
    A(f"  v_add_u32 v{DR}, {DESC}, v{DR}")
    A(f"  v_cndmask_b32 v{DR+1}, v{DR+1}, v{AS+1}, vcc")
    A(f"  v_lshl_or_b32 v{DR+1}, v{DR+1}, 16, v{REC+1}")
    A(f"  ds_write_b32 v{DR}, v{DR+1}")
    A(f"  v_add_u32 v{REC}, 8, v{REC}")
    A(f"  v_add_u32 v30, -8, v30")
    A(f"  s_branch M_DESC")
    A("M_DESCD:")
    A(f"  s_mov_b64 exec, -1")
    A(f"  s_cmp_lg_u32 s{sWV}, 0")
    A(f"  s_cbranch_scc1 M_NODEG")
    A(f"  v_add_u32 v3, {DEG-CNT}, v3")
    A(f"  ds_add_u32 v3, v17")
    A(f"  ds_write_b32 v3, v{AB+1} offset:{CAR-DEG}")
    A("M_NODEG:")
    A("  s_waitcnt lgkmcnt(0)")
    for k in range(16):
        r=RC+2*k
        A(f"  s_mov_b64 exec, s[{sMK+2*k}:{sMK+2*k+1}]")
        A(f"  v_lshl_add_u32 v{r+1}, v{RK+k}, 2, v{r+1}")
        A(f"  ds_write_b32 v{r+1}, v{r}")
    A(f"  s_mov_b64 exec, -1")
    A(f"  s_mov_b32 s{sCNT}, s{sNT}")
    if EXP&1:
        A(f"  s_cmp_ge_u32 s{sWV}, 4")
        A(f"  s_cselect_b32 s{sCNT}, 0, s{sCNT}")
    A(f"  v_mov_b32 v{CHK}, 0")
    A(f"  v_mov_b32 v{CHK+1}, 0")
    A(f"  v_mov_b32 v{N_}, 0")
    A(f"  v_mov_b32 v{N_+1}, 0")
    A(f"  v_mov_b32 v{DN}, 1.0")
    A(f"  v_mov_b32 v{DN+1}, 1.0")
    A(f"  v_add_u32 v{AS}, {40*RS+S_-BD}, v{L4}")
    A(f"  v_add_u32 v{AS+1}, {40*RS+S_-BD}, v{L4}")
    A(f"  v_mov_b32 v{A5[0]+3}, 0")
    A(f"  v_mov_b32 v{A5[1]+3}, 0")
    for t in range(4):
        A(f"  v_mov_b32 v{ACC[t]}, 0")
        A(f"  v_mov_b32 v{ACC[t]+1}, 0")
    A(f"  v_lshlrev_b32 v30, 4, v1")
    A(f"  v_add_u32 v30, {WST}, v30")
    A("  s_waitcnt lgkmcnt(0)")
    A("  s_barrier")
    ts(L,'bar3')
    A(f"  ds_read_b128 {q4('v',REC)}, v{P128}")
    A(f"  ds_read_b128 {q4('v',D[0])}, v{P128} offset:32")
    A(f"  ds_read_b128 {q4('v',D[0]+4)}, v{P128} offset:64")
    A(f"  ds_read_b32 v{A5[0]}, v{P32}")
    A(f"  ds_read_b64 {v2(DR)}, v{PD}")
    A("  s_waitcnt lgkmcnt(4)")
    L+=dma(0)
    A("  s_waitcnt lgkmcnt(3)")
    L+=dma(1,D[0])
    A("  s_waitcnt lgkmcnt(0)")
    L+=[sdwa_add(AB,DR,L4,0), sdwa_add(AB+1,DR+1,L4,0)]
    L+=a5mask(0)
    Q=DSQ()
    for tt in range(4): L+=bd_reads(Q,tt)
    A(f"  s_cmp_lg_u32 s{sWL}, 0")
    A(f"  s_cbranch_scc1 M_NOW")
    for i in range(16):
        A(f"  ds_read_b128 {q4('a',W+4*i)}, v30 offset:{i*1024}")
    A(f"  s_mov_b32 s{sWL}, 1")
    A("M_NOW:")
    A(f"  s_cmp_eq_u32 s{sCNT}, 0")
    A(f"  s_cbranch_scc1 M_DONE")
    A("  s_waitcnt vmcnt(4)")
    for s in range(4): A(f"  ds_read_b128 {q4('a',X[0]+4*s)}, v{XA+s}")
    A("  s_waitcnt lgkmcnt(0)")
    L+=dma(0,D[0]+4)
    L+=mfmas(D[0],0,0)
    ts(L,'loop')
    A("  s_nop 7"); A("  s_nop 3")
    A(f"  s_cmp_lg_u32 s{sMODE}, 0")
    A(f"  s_cbranch_scc1 M_LOOPS")
    L=fix(L)
    L+=fastloop()
    L+=mainloop(True)
    E=[]; A=E.append
    A("M_DONE:")
    A(f"  s_cmp_lg_u32 s{sLD}, 0")
    A(f"  s_cbranch_scc1 M_DONE2")
    E+=w2_loads()
    A("M_DONE2:")
    A(f"  v_add_f32 v{CHK}, v{CHK}, v{CHK+1}")
    A(f"  v_mov_b32 v2, 1")
    A(f"  v_mov_b32 v31, {OVF}")
    A(f"  v_cmp_ngt_f32 vcc, s{sTH}, v{CHK}")
    A(f"  s_mov_b64 exec, vcc")
    A(f"  ds_write_b32 v31, v2")
    A(f"  s_mov_b64 exec, -1")
    A(f"  v_and_b32 v30, 15, v1")
    A(f"  s_lshr_b32 s41, s{sWV}, 1")
    A(f"  s_lshl_b32 s41, s41, 4")
    A(f"  v_add_u32 v30, s41, v30")
    A(f"  v_lshlrev_b32 v2, 2, v30")
    A(f"  v_add_u32 v2, {DEG}, v2")
    A(f"  ds_read_b32 v{DR}, v2 offset:{CAR-DEG}")
    A(f"  ds_read_b32 v2, v2")
    A(f"  v_lshrrev_b32 v17, 4, v1")
    A(f"  v_lshlrev_b32 v{CIN}, 5, v17")
    A(f"  v_add_u32 v{CIN}, {S_}, v{CIN}")
    A(f"  s_mov_b32 s45, {RS}")
    A(f"  v_mad_u32_u24 v3, v30, s45, v{CIN}")
    A(f"  v_add_u32 v{CIN}, {40*RS}, v{CIN}")
    A("  s_waitcnt lgkmcnt(0)")
    A(f"  v_and_b32 v{AB}, 0xff, v{DR}")
    A(f"  v_lshrrev_b32 v{DR}, 8, v{DR}")
    A(f"  v_mad_u32_u24 v{AB}, v{AB}, s45, v{CIN}")
    A("  s_waitcnt vmcnt(0)")
    ts(E,'done')
    A("  s_barrier")
    ts(E,'bar4')
    A(f"  s_cmp_ge_u32 s{sWV}, 6")
    A(f"  s_cbranch_scc1 M_EPD")
    for s in range(4):
        A(f"  ds_read_b128 {q4('v',D[0]+8*s)}, v3 offset:{128*s}")
        A(f"  ds_read_b128 {q4('v',D[0]+8*s+4)}, v3 offset:{128*s+16}")
    A("M_CARRY:")
    A(f"  v_cmp_lt_i32 vcc, 0, v{DR}")
    A(f"  s_cbranch_vccz M_CARRYD")
    A(f"  v_add_u32 v{AB}, {RS}, v{AB}")
    A(f"  v_add_u32 v{DR}, -1, v{DR}")
    A(f"  v_cndmask_b32 v{AB+1}, v{CIN}, v{AB}, vcc")
    for hf in range(2):
        for s in range(2):
            A(f"  ds_read_b128 {q4('v',T+8*s)}, v{AB+1} offset:{128*(2*hf+s)}")
            A(f"  ds_read_b128 {q4('v',T+8*s+4)}, v{AB+1} offset:{128*(2*hf+s)+16}")
        for i in range(8):
            if i%2==0: A(f"  s_waitcnt lgkmcnt({3-i//2})")
            A(pk('add',D[0]+16*hf+2*i,D[0]+16*hf+2*i,T+2*i))
    A(f"  s_branch M_CARRY")
    A("M_CARRYD:")
    ts(E,'carry')
    A(f"  s_cmp_lg_u32 s{sMORE}, 0")
    A(f"  s_cbranch_scc1 M_FOLD")
    A(f"  s_mov_b32 s40, 0xffff0000")
    A("  s_waitcnt lgkmcnt(0)")
    EAC=[18,22]
    for s in range(4):
        b=D[0]+8*s; hi=T+8*(s&1); lo=hi+4
        for j in range(4): A(f"  v_cvt_pk_bf16_f32 v{hi+j}, v{b+2*j}, v{b+2*j+1}")
        for cc in range(2):
            c="0" if s==0 else q4('v',EAC[cc])
            A(f"  v_mfma_f32_16x16x32_bf16 {q4('v',EAC[cc])}, {q4('a',W2+16*cc+4*s)}, {q4('v',hi)}, {c}")
        for j in range(4):
            A(f"  v_lshlrev_b32 v{REC}, 16, v{hi+j}")
            A(f"  v_and_b32 v{REC+1}, s40, v{hi+j}")
            A(f"  v_sub_f32 v{b+2*j}, v{b+2*j}, v{REC}")
            A(f"  v_sub_f32 v{b+2*j+1}, v{b+2*j+1}, v{REC+1}")
        for j in range(4): A(f"  v_cvt_pk_bf16_f32 v{lo+j}, v{b+2*j}, v{b+2*j+1}")
        for cc in range(2):
            A(f"  v_mfma_f32_16x16x32_bf16 {q4('v',EAC[cc])}, {q4('a',W2+16*cc+4*s)}, {q4('v',lo)}, {q4('v',EAC[cc])}")
    A(f"  v_cvt_f32_u32 v2, v2")
    for cc in range(2):
        for j in range(2):
            A(f"  v_lshlrev_b32 v{D[0]+4*cc+2*j}, 16, v{B2+2*cc+j}")
            A(f"  v_and_b32 v{D[0]+4*cc+2*j+1}, s40, v{B2+2*cc+j}")
    for i in range(8): A(f"  v_mul_f32 v{D[0]+i}, v{D[0]+i}, v2")
    A(f"  s_mov_b32 s42, 0xbf317218")
    A(f"  v_add_u32 v3, s{sN0}, v30")
    A(f"  v_lshlrev_b32 v3, 7, v3")
    A(f"  v_lshl_add_u32 v3, v17, 3, v3")
    A(f"  s_and_b32 s43, s{sWV}, 1")
    A(f"  s_lshl_b32 s43, s43, 6")
    A(f"  v_cmp_gt_u32 vcc, s{sNN}, v30")
    A(f"  s_mov_b64 exec, vcc")
    for i in range(8): A(f"  v_fma_f32 v{D[0]+i}, v{18+i}, s42, v{D[0]+i}")
    for cc in range(2):
        for j in range(2): A(f"  v_cvt_pk_bf16_f32 v{T+2*cc+j}, v{D[0]+4*cc+2*j}, v{D[0]+4*cc+2*j+1}")
        A(f"  buffer_store_dwordx2 {v2(T+2*cc)}, v3, s[{sOUT}:{sOUT+3}], s43 offen offset:{32*cc}")
    A(f"  v_mul_f32 v2, 0, v18")
    for i in range(1,8): A(f"  v_fma_f32 v2, v{18+i}, 0, v2")
    A(f"  v_cmp_u_f32 vcc, v2, v2")
    A(f"  v_mov_b32 v2, 1")
    A(f"  s_mov_b64 exec, vcc")
    A(f"  ds_write_b32 v31, v2")
    A(f"  s_mov_b64 exec, -1")
    A("M_EPD:")
    ts(E,'epi')
    A(f"  s_cmp_lg_u32 s{sMORE}, 0")
    A(f"  s_cbranch_scc1 M_NEXT")
    A(f"  s_cmp_lg_u32 s{sMODE}, 0")
    A(f"  s_cbranch_scc1 M_EXIT")
    A("  s_waitcnt lgkmcnt(0)")
    A("  s_barrier")
    A(f"  ds_read_b32 v2, v31")
    A("  s_waitcnt lgkmcnt(0)")
    A(f"  v_readfirstlane_b32 s40, v2")
    A(f"  s_cmp_lg_u32 s40, 0")
    if not EXP: A(f"  s_cbranch_scc1 M_RESTART")
    ts(E,'end')
    ts_store(E, 0x600000, f"s{sWV}")
    A("M_EXIT:")
    A("  s_endpgm")
    A("M_SLOW:")
    A("  s_waitcnt lgkmcnt(0)")
    A("  s_barrier")
    A("M_RESTART:")
    A(f"  s_mov_b32 s{sCAP}, {CAPS}")
    A(f"  s_mov_b32 s{sMODE}, 1")
    A(f"  s_mov_b32 s{sRB}, 0")
    A(f"  v_lshlrev_b32 v3, 4, v0")
    for i in range(4): A(f"  v_mov_b32 v{T+i}, 0")
    fill(E, S_, 41*RS, T)
    fill(E, DEG, 256, T)
    A("  s_branch M_HEAD")
    A("M_FOLD:")
    A(f"  s_bitcmp1_b32 s{sWV}, 0")
    A(f"  s_cbranch_scc1 M_NEXT")
    A(f"  v_cmp_gt_u32 vcc, 40, v30")
    A("  s_waitcnt lgkmcnt(0)")
    A(f"  s_mov_b64 exec, vcc")
    for s in range(4):
        A(f"  ds_write_b128 v3, {q4('v',D[0]+8*s)} offset:{128*s}")
        A(f"  ds_write_b128 v3, {q4('v',D[0]+8*s+4)} offset:{128*s+16}")
    A(f"  s_mov_b64 exec, -1")
    A("M_NEXT:")
    A("  s_waitcnt lgkmcnt(0)")
    A("  s_barrier")
    A(f"  s_add_u32 s{sRB}, s{sRB}, s{sCAP}")
    A("M_HEAD:")
    round_head(E,False)
    A("  s_branch M_COUNT")
    L+=fix(E)
    return L
```

```python
from asmlib import *
WS_REC=0; WS_OFF=0x500000; WS_W1A=0x580000; WS_W1B=0x584000; WS_W2=0x588000; WS_CST=0x58C000; WS_B1=0x58C400; WS_B2=0x58C600; WS_SIZE=0x700000
OFS_RS=1152
LOG2E_BITS=0x3FB8AA3B
def srd(L, d, b, size):
    L += [f"  s_mov_b32 s{d}, s{b}", f"  s_mov_b32 s{d+1}, s{b+1}", f"  s_mov_b32 s{d+2}, {size}", f"  s_mov_b32 s{d+3}, 0x00020000"]
def scan64(L, v, op='v_add_u32_dpp'):
    for sh in (1,2,4,8):
        L.append(f"  {op} v{v}, v{v}, v{v} row_shr:{sh} row_mask:0xf bank_mask:0xf bound_ctrl:0")
    L.append(f"  {op} v{v}, v{v}, v{v} row_bcast:15 row_mask:0xa bank_mask:0xf")
    L.append(f"  {op} v{v}, v{v}, v{v} row_bcast:31 row_mask:0xc bank_mask:0xf")
import os
TS=int(os.environ.get('TS','0'))
K1V=int(os.environ.get('K1V','0'))
def ts1(L,i,real=False):
    if not TS: return
    L.append(f"  s_memrealtime s[{84+2*i}:{85+2*i}]" if real else f"  s_memtime s[{84+2*i}:{85+2*i}]")
    L.append("  s_waitcnt lgkmcnt(0)")
def ts1_store(L):
    if not TS: return
    A=L.append
    A("  s_waitcnt vmcnt(0)")
    A("  s_memrealtime s[100:101]")
    A("  v_lshrrev_b32 v2, 6, v0")
    A("  v_readfirstlane_b32 s41, v2")
    A("  s_waitcnt lgkmcnt(0)")
    A(f"  s_lshl_b32 s40, s2, 4")
    A(f"  s_add_u32 s40, s40, s41")
    A(f"  s_lshl_b32 s40, s40, 6")
    A(f"  s_add_u32 s40, s40, 0x680000")
    A("  v_mov_b32 v2, 0")
    A("  s_mov_b64 exec, 1")
    for i in range(9):
        A(f"  v_mov_b32 v3, s{84+2*i}")
        A(f"  buffer_store_dword v3, v2, s[24:27], s40 offen offset:{4*i}")
K1_STAGE=2560
K1_LDS=K1_STAGE+20000
def kernel1():
    L=[]
    A=L.append
    A("part_kernel:")
    A("  s_cmp_ge_u32 s2, 263")
    A("  s_cbranch_scc1 P_EXIT")
    A("  s_cmp_ge_u32 s2, 256")
    A("  s_cbranch_scc1 P_PREP")
    A("  s_load_dwordx4 s[4:7], s[0:1], 8")
    A("  s_load_dwordx2 s[8:9], s[0:1], 24")
    A("  s_load_dwordx2 s[10:11], s[0:1], 80")
    A("  v_lshlrev_b32 v1, 2, v0")
    A("  v_mov_b32 v2, 0")
    A("  ds_write_b32 v1, v2")
    A("  v_lshlrev_b32 v1, 4, v0")
    A("  v_lshlrev_b32 v3, 3, v0")
    A("  s_mul_i32 s3, s2, 10000")
    A("  s_mul_i32 s28, s2, 5000")
    A("  s_mul_i32 s29, s2, 20000")
    A("  s_add_u32 s30, s29, 10000")
    A("  s_mov_b32 s31, 214749")
    A("  s_mov_b32 s32, 0xffff0000")
    A("  v_mov_b32 v2, 1")
    A("  v_cmp_gt_u32 vcc, 625, v0")
    A("  s_and_saveexec_b64 s[34:35], vcc")
    ts1(L,0,True); ts1(L,1)
    A("  s_waitcnt lgkmcnt(0)")
    srd(L,16,8,2560000)
    A("  buffer_load_dwordx4 v[8:11], v1, s[16:19], s3 offen")
    srd(L,12,6,2560000)
    A("  buffer_load_dwordx4 v[4:7], v1, s[12:15], s3 offen")
    srd(L,20,4,1280000)
    A("  buffer_load_dwordx2 v[12:13], v3, s[20:23], s28 offen")
    srd(L,24,10,WS_SIZE)
    if K1V&1:
        A("  s_load_dwordx2 s[44:45], s[0:1], 0")
        A("  s_load_dwordx2 s[46:47], s[0:1], 64")
        A("  s_load_dwordx4 s[48:51], s[0:1], 32")
        A("  s_load_dwordx2 s[52:53], s[0:1], 56")
        A("  v_cmp_gt_u32 vcc, 64, v0")
        A("  s_cbranch_vccz P_NOWARM")
        A("  s_lshr_b32 s36, s2, 3")
        A("  s_and_b32 s36, s36, 7")
        A("  s_mul_i32 s36, s36, 2560")
        A("  v_mul_u32_u24 v41, 20480, v0")
        A("  v_mov_b32 v42, 0")
        A("  s_waitcnt lgkmcnt(0)")
        srd(L,56,44,1280000)
        A("  buffer_load_dword v43, v41, s[56:59], s36 offen")
        srd(L,60,46,1280000)
        A("  buffer_load_dword v43, v41, s[60:63], s36 offen")
        srd(L,64,48,33024)
        A("  buffer_load_dword v43, v41, s[64:67], s36 offen")
        srd(L,68,50,256)
        A("  buffer_load_dword v43, v42, s[68:71], 0 offen")
        srd(L,72,52,128)
        A("  buffer_load_dword v43, v42, s[72:75], 0 offen")
        A(f"  s_mov_b32 s37, {WS_W1A}")
        A("  v_lshlrev_b32 v42, 10, v0")
        A("  buffer_load_dword v43, v42, s[24:27], s37 offen")
        A("  s_branch P_WARMD")
        A("P_NOWARM:")
        for i in range(6): A("  buffer_load_dword v43, v1, s[16:19], s3 offen")
        A("P_WARMD:")
    ts1(L,2)
    A("  s_barrier")
    A(f"  s_waitcnt vmcnt({2+(6 if K1V&1 else 0)})")
    ts1(L,3)
    for i in range(4):
        A(f"  v_mul_u32_u24 v{14+i}, s31, v{8+i}")
    for i in range(4):
        A(f"  v_lshrrev_b32 v{14+i}, 21, v{14+i}")
    for i in range(4):
        A(f"  v_and_b32 v{14+i}, 0x3fc, v{14+i}")
        A(f"  ds_add_rtn_u32 v{18+i}, v{14+i}, v2")
    A(f"  s_waitcnt vmcnt({6 if K1V&1 else 0})")
    ts1(L,4)
    A("  v_lshl_or_b32 v4, v12, 16, v4")
    A("  v_and_or_b32 v5, v12, s32, v5")
    A("  v_lshl_or_b32 v6, v13, 16, v6")
    A("  v_and_or_b32 v7, v13, s32, v7")
    A("  s_waitcnt lgkmcnt(0)")
    A("  s_barrier")
    A("  v_cmp_gt_u32 vcc, 64, v0")
    A("  s_cbranch_vccz P_NOSCAN")
    A("  ds_read_b128 v[24:27], v1")
    A("  s_and_b32 s33, s2, 7")
    A("  s_lshl_b32 s33, s33, 7")
    A("  s_lshr_b32 s36, s2, 3")
    A("  s_lshl_b32 s36, s36, 2")
    A("  s_add_u32 s33, s33, s36")
    A(f"  s_add_u32 s33, s33, {WS_OFF}")
    A(f"  v_mul_u32_u24 v41, {4*OFS_RS}, v0")
    A("  s_waitcnt lgkmcnt(0)")
    A("  v_add_u32 v29, v24, v25")
    A("  v_add_u32 v30, v29, v26")
    A("  v_add_u32 v31, v30, v27")
    A("  v_mov_b32 v28, v31")
    scan64(L,28)
    A("  v_sub_u32 v32, v28, v31")
    A("  v_add_u32 v33, v32, v24")
    A("  v_add_u32 v34, v32, v29")
    A("  v_add_u32 v35, v32, v30")
    A(f"  v_mov_b32 v40, {K1_STAGE}")
    for i in range(4):
        A(f"  v_lshl_add_u32 v{36+i}, v{32+i}, 3, v40")
    A("  ds_write_b128 v1, v[36:39] offset:1024")
    for i in range(4):
        A(f"  v_lshl_or_b32 v{32+i}, v{24+i}, 16, v{32+i}")
    for i in range(4):
        A(f"  buffer_store_dword v{32+i}, v41, s[24:27], s33 offen offset:{OFS_RS*i}")
    A("  s_waitcnt lgkmcnt(0)")
    A("P_NOSCAN:")
    A("  s_barrier")
    ts1(L,5)
    for i in range(4):
        A(f"  ds_read_b32 v{14+i}, v{14+i} offset:1024")
    for i in range(4):
        A(f"  s_waitcnt lgkmcnt({3-i})")
        A(f"  v_lshl_add_u32 v{14+i}, v{18+i}, 3, v{14+i}")
    for i in range(4):
        A(f"  ds_write2_b32 v{14+i}, v{4+i}, v{8+i} offset0:0 offset1:1")
    A("  s_waitcnt lgkmcnt(0)")
    A("  s_barrier")
    ts1(L,6)
    A(f"  ds_read_b128 v[4:7], v1 offset:{K1_STAGE}")
    A(f"  ds_read_b128 v[8:11], v1 offset:{K1_STAGE+10000}")
    A("  s_waitcnt lgkmcnt(1)")
    A("  buffer_store_dwordx4 v[4:7], v1, s[24:27], s29 offen")
    A("  s_waitcnt lgkmcnt(0)")
    A("  buffer_store_dwordx4 v[8:11], v1, s[24:27], s30 offen")
    ts1(L,7)
    ts1_store(L)
    A("P_EXIT:")
    A("  s_endpgm")
    A("P_CST:")
    A("  s_load_dwordx4 s[4:7], s[0:1], 32")
    A("  s_load_dwordx2 s[8:9], s[0:1], 56")
    A("  s_load_dwordx2 s[10:11], s[0:1], 80")
    A("  v_cmp_gt_u32 vcc, 64, v0")
    A("  s_cbranch_vccz P_EXIT")
    A("  v_and_b32 v1, 31, v0")
    A("  v_lshlrev_b32 v1, 1, v1")
    A("  v_lshlrev_b32 v2, 2, v0")
    A("  s_mov_b32 s31, 0xBFB8AA3B")
    A(f"  s_mov_b32 s30, {128*256}")
    A("  s_waitcnt lgkmcnt(0)")
    srd(L,24,10,WS_SIZE)
    srd(L,12,4,129*256)
    srd(L,16,6,256)
    srd(L,20,8,128)
    for t in range(4): A(f"  buffer_load_ushort v{4+t}, v1, s[12:15], s30 offen offset:{64*t}")
    A("  buffer_load_dword v8, v2, s[16:19], 0 offen")
    A("  buffer_load_dword v10, v2, s[20:23], 0 offen")
    A("  v_cmp_lt_u32 vcc, 31, v0")
    A("  s_waitcnt vmcnt(0)")
    for t in range(4):
        r=4+t
        A(f"  v_lshlrev_b32 v{r}, 16, v{r}")
        A(f"  v_mul_f32 v{r}, s31, v{r}")
        A(f"  v_cvt_pk_bf16_f32 v12, 0, v{r}")
        A(f"  v_sub_f32 v{r}, v{r}, v12")
        A(f"  v_cvt_pk_bf16_f32 v{r}, 0, v{r}")
        A(f"  v_cndmask_b32 v{r}, v12, v{r}, vcc")
    A("  v_and_b32 v9, 0xffff0000, v8")
    A("  v_lshlrev_b32 v8, 16, v8")
    A("  v_mul_f32 v8, s31, v8")
    A("  v_mul_f32 v9, s31, v9")
    A("  v_lshlrev_b32 v1, 4, v0")
    A("  v_lshlrev_b32 v3, 3, v0")
    A(f"  s_mov_b32 s30, {WS_CST}")
    A("  buffer_store_dwordx4 v[4:7], v1, s[24:27], s30 offen")
    A(f"  buffer_store_dwordx2 v[8:9], v3, s[24:27], s30 offen offset:{WS_B1-WS_CST}")
    A(f"  buffer_store_dword v10, v2, s[24:27], s30 offen offset:{WS_B2-WS_CST}")
    A("  s_endpgm")
    A("P_PREP:")
    A("  s_cmp_eq_u32 s2, 262")
    A("  s_cbranch_scc1 P_CST")
    A("  s_load_dwordx2 s[4:5], s[0:1], 32")
    A("  s_load_dwordx2 s[6:7], s[0:1], 48")
    A("  s_load_dwordx2 s[10:11], s[0:1], 80")
    A("  v_cmp_gt_u32 vcc, 512, v0")
    A("  s_cbranch_vccz P_EXIT")
    A("  s_sub_u32 s3, s2, 256")
    A("  s_and_b32 s28, s3, 1")
    A("  s_lshl_b32 s28, s28, 9")
    A("  v_add_u32 v1, s28, v0")
    A("  s_lshr_b32 s29, s3, 1")
    A("  s_lshl_b32 s30, s29, 14")
    A(f"  s_add_u32 s30, s30, {WS_W1A}")
    A("  s_mov_b32 s31, 1.0")
    A("  s_cmp_eq_u32 s29, 0")
    A(f"  s_cselect_b32 s31, 0xBFB8AA3B, s31")
    A("  s_waitcnt lgkmcnt(0)")
    srd(L,24,10,WS_SIZE)
    srd(L,12,4,129*256)
    srd(L,16,6,128*128)
    A("  s_cmp_eq_u32 s29, 2")
    A("  s_cbranch_scc1 P_PREP2")
    A("  v_bfe_u32 v2, v1, 5, 1")
    A("  v_bfe_u32 v3, v1, 6, 2")
    A("  v_lshlrev_b32 v2, 13, v2")
    A("  v_lshl_add_u32 v2, v3, 11, v2")
    A("  v_lshrrev_b32 v3, 8, v1")
    A("  v_lshl_add_u32 v2, v3, 6, v2")
    A("  v_and_b32 v3, 31, v1")
    A("  v_lshl_add_u32 v2, v3, 1, v2")
    A("  s_lshl_b32 s32, s29, 14")
    for j in range(8):
        A(f"  buffer_load_ushort v{8+j}, v2, s[12:15], s32 offen offset:{256*j}")
    A("  s_branch P_PREP3")
    A("P_PREP2:")
    A("  v_bfe_u32 v2, v1, 4, 2")
    A("  v_bfe_u32 v3, v1, 6, 2")
    A("  v_lshlrev_b32 v2, 10, v2")
    A("  v_lshl_add_u32 v2, v3, 12, v2")
    A("  v_lshrrev_b32 v3, 8, v1")
    A("  v_lshl_add_u32 v2, v3, 5, v2")
    A("  v_and_b32 v3, 15, v1")
    A("  v_lshl_add_u32 v2, v3, 1, v2")
    for j in range(8):
        A(f"  buffer_load_ushort v{8+j}, v2, s[16:19], 0 offen offset:{128*j}")
    A("P_PREP3:")
    A("  v_lshlrev_b32 v1, 4, v1")
    A("  s_waitcnt vmcnt(0)")
    for j in range(8):
        A(f"  v_lshlrev_b32 v{8+j}, 16, v{8+j}")
    for j in range(8):
        A(f"  v_mul_f32 v{8+j}, s31, v{8+j}")
    for j in range(4):
        A(f"  v_cvt_pk_bf16_f32 v{4+j}, v{8+2*j}, v{9+2*j}")
    A("  buffer_store_dwordx4 v[4:7], v1, s[24:27], s30 offen")
    A("  s_endpgm")
    return fix(L)
```

```python
from asmlib import *
from k1 import *
import os
CAP=28
BD=0; RS=528; S_=BD+41*RS; DEG=S_+72*RS; CAR=DEG+256; OVF=CAR+256; CNT=OVF+16; MORE=CNT+256; GB=MORE+16
CAPS=12
SORT=(GB+256+127)//128*128; LMAX=16; SORTN=32*LMAX*32+128; DESC=SORT+SORTN; DESCN=(LMAX+2)*128; XR=DESC+DESCN; WST=XR+5120; K2_LDS=WST+16384
assert CAPS*32+40<=32*LMAX
assert K2_LDS<=163840
Z0=BD+40*RS
DUMMY=(40*RS)|((40*RS+S_-BD)<<16)
H64=4; XO=5; OH=10; L4=12; P128=13; P32=14; PD=15; CHK=16; N_=18; DN=20; AA=22; R_=24; AB=26; AS=28
REC=32; A5=[36,40]; B5=[44,48,52,56]; D=[60,76]; T=92; B2=108; DR=112; CIN=114; DRR=[112,114]; ACC=[116,118,120,122]; NV=124
W=0; X=[64,80]; W2=96; NA=128
sX=4; sWS=8; sW1=12; sOUT=16; sB1=20; sB2=24
sN0=28; sNN=29; sWV=30; sRB=31; sMODE=32; sNT=33; sCNT=34; sMORE=35; s128=36; sTHR=37; sTH=39; sBK=3; sFL=48; sLD=49; sWL=50; sCAP=51
sMK=52
NLOG2E=0xBFB8AA3B
TS=int(os.environ.get('TS','0'))
ALIGN=int(os.environ.get('ALIGN','0'))
EXP=int(os.environ.get('EXP','0'))
PL=[int(x) for x in os.environ.get('PL','5,6,8,19,22,22,22,22,24,27,28,30').split(',')]
PR=[int(x) for x in os.environ.get('PR','7,4,2').split(',')]
TSP=os.environ.get('TSP','start,bar1,bar2,bar3,loop,done,bar4').split(',')
def ts(L,name,real=False):
    if not TS: return
    if real: i=0
    elif name in TSP: i=1+TSP.index(name)
    else: return
    L.append(f"  s_memrealtime s[{84+2*i}:{85+2*i}]" if real else f"  s_memtime s[{84+2*i}:{85+2*i}]")
    L.append("  s_waitcnt lgkmcnt(0)")
def ts_store(L, base, wvs):
    if not TS: return
    A=L.append
    A("  s_memrealtime s[100:101]")
    A("  s_waitcnt lgkmcnt(0)")
    A(f"  s_lshl_b32 s40, s2, 4")
    A(f"  s_add_u32 s40, s40, {wvs}")
    A(f"  s_lshl_b32 s40, s40, 6")
    A(f"  s_add_u32 s40, s40, {base}")
    A("  v_mov_b32 v2, 0")
    A("  s_mov_b64 exec, 1")
    for i in range(9):
        A(f"  v_mov_b32 v3, s{84+2*i}")
        A(f"  buffer_store_dword v3, v2, s[{sWS}:{sWS+3}], s40 offen offset:{4*i}")
    A(f"  v_mov_b32 v3, s{sNT}")
    A(f"  buffer_store_dword v3, v2, s[{sWS}:{sWS+3}], s40 offen offset:36")
def q4(p,r): return f"{p}[{r}:{r+3}]"
def v2(r): return f"v[{r}:{r+1}]"
def pk(op,d,a,b,c=None):
    f=lambda r: r if isinstance(r,str) else v2(r)
    if c is None: return f"  v_pk_{op}_f32 {f(d)}, {f(a)}, {f(b)}"
    return f"  v_pk_{op}_f32 {f(d)}, {f(a)}, {f(b)}, {f(c)}"
def sdwa_add(d,a,b,w): return f"  v_add_u32_sdwa v{d}, v{a}, v{b} dst_sel:DWORD dst_unused:UNUSED_PAD src0_sel:WORD_{w} src1_sel:DWORD"
class DSQ:
    def __init__(s): s.q=[]; s.blk=None; s.nb=0
    def issue(s,tag): s.q.append((tag,s.blk))
    def begin(s): s.nb+=1; s.blk=s.nb
    def end(s): s.blk=None
    def wait(s,*tags):
        n=None
        for i,(t,b) in enumerate(s.q):
            if t in tags:
                m=sum(1 for (t2,b2) in s.q[i+1:] if b2 is None or b2==b)
                n=m if n is None else min(n,m)
        if n is None: return []
        n=min(n,15)
        keep=[]
        for i,(t,b) in enumerate(s.q):
            m=sum(1 for (t2,b2) in s.q[i+1:] if b2 is None or b2==b)
            if m<n: keep.append((t,b))
        s.q=keep
        return [f"  s_waitcnt lgkmcnt({n})"]
NPK=int(os.environ.get('NPK','0'))
def chain_np(Dc):
    ins=[]
    for h in range(2): ins.append(f"  v_add_f32 v{AA+h}, 1.0, v{T+h}")
    for h in range(2): ins.append(f"  v_fma_f32 v{N_+h}, v{Dc+h}, v{T+2+h}, v{Dc+h}")
    for h in range(2): ins.append(f"  v_fma_f32 v{DN+h}, v{AA+h}, v{T+2+h}, v{AA+h}")
    for h in range(2): ins.append(f"  v_fmac_f32 v{N_+h}, v{Dc+2+h}, v{AA+h}")
    for j in range(2,8):
        for h in range(2): ins.append(f"  v_fmac_f32 v{N_+h}, v{N_+h}, v{T+2*j+h}")
        for h in range(2): ins.append(f"  v_fmac_f32 v{N_+h}, v{Dc+2*j+h}, v{DN+h}")
        for h in range(2): ins.append(f"  v_fmac_f32 v{DN+h}, v{DN+h}, v{T+2*j+h}")
    return ins
def sub4(Dc,T,N_,DN,AA):
    ins=[pk('add',AA,T,"1.0")+" op_sel_hi:[1,0]", pk('fma',N_,Dc,T+2,Dc), pk('fma',DN,AA,T+2,AA), pk('fma',N_,Dc+2,AA,N_)]
    for j in range(2,4):
        ins+=[pk('fma',AA,Dc+2*j,DN,N_), pk('fma',DN,DN,T+2*j,DN), pk('fma',N_,N_,T+2*j,AA)]
    return ins
CH2=int(os.environ.get('CH2','0'))
def chain(Dc):
    if NPK: return chain_np(Dc)
    if CH2:
        a=sub4(Dc,T,N_,DN,AA); b=sub4(Dc+8,T+8,REC,REC+2,8)
        return [x for pr in zip(a,b) for x in pr]+[pk('mul',AA,REC,DN), pk('mul',DN,DN,REC+2), pk('fma',N_,N_,REC+2,AA)]
    ins=[pk('add',AA,T,"1.0")+" op_sel_hi:[1,0]", pk('fma',N_,Dc,T+2,Dc), pk('fma',DN,AA,T+2,AA), pk('fma',N_,Dc+2,AA,N_)]
    for j in range(2,8):
        ins+=[pk('fma',AA,Dc+2*j,DN,N_), pk('fma',DN,DN,T+2*j,DN), pk('fma',N_,N_,T+2*j,AA)]
    return ins
def chain_safe(Dc):
    ins=[]
    for j in range(8): ins.append(pk('add',T+2*j,T+2*j,"1.0")+" op_sel_hi:[1,0]")
    for i in range(16): ins.append(f"  v_rcp_f32 v{T+i}, v{T+i}")
    ins.append(pk('mul',N_,Dc,T))
    for j in range(1,8): ins.append(pk('fma',N_,Dc+2*j,T+2*j,N_))
    return ins
def mfmas(Dn_,tn,pp):
    ms=[f"  v_mfma_f32_32x32x16_bf16 v[{Dn_}:{Dn_+15}], {q4('v',A5[pp])}, {q4('v',B5[tn])}, 0"]
    for s in range(4):
        ms.append(f"  v_mfma_f32_32x32x16_bf16 v[{Dn_}:{Dn_+15}], {q4('a',X[pp]+4*s)}, {q4('a',W+16*tn+4*s)}, v[{Dn_}:{Dn_+15}]")
    return ms
def bd_reads(Q,tt):
    Q.issue(f'b5_{tt}'); Q.issue(f'b5_{tt}')
    return [f"  ds_read_b32 v{B5[tt]+1}, v{AB} offset:{128*tt}", f"  ds_read_b32 v{B5[tt]+2}, v{AB+1} offset:{128*tt}"]
def cin_reads(Q,tt):
    Q.issue('cin'); Q.issue('cin')
    return [f"  ds_read_b32 v{CIN}, v{AS} offset:{128*tt}", f"  ds_read_b32 v{CIN+1}, v{AS+1} offset:{128*tt}"]
def s_writes(Q,tt):
    Q.issue('wr'); Q.issue('wr')
    return [f"  ds_write_b32 v{AS}, v{R_} offset:{128*tt}", f"  ds_write_b32 v{AS+1}, v{R_+1} offset:{128*tt}"]
def xaddr(pp, xo=XO): return f"  v_mad_u32_u16 v{xo}, v{A5[pp]}, s{s128}, v{H64}"
def xld(pp, s, xo=XO): return f"  buffer_load_dwordx4 {q4('a',X[pp]+4*s)}, v{xo}, s[{sX}:{sX+3}], 0 offen offset:{16*s}"
def a5mask(pp):
    return [f"  v_cmp_le_i16 vcc, 0, v{A5[pp]}",
            f"  v_cndmask_b32 v{A5[pp]+1}, 0, v{OH}, vcc", f"  v_cndmask_b32 v{A5[pp]+2}, 0, v{OH+1}, vcc"]
def fin_ops(Q,safe,tt):
    out=[]
    if not safe:
        out.append(pk('add',CHK,CHK,DN))
        out+=Q.wait('cin')
        out.append(pk('fma',R_,N_,R_,CIN))
    else:
        out+=Q.wait('cin')
        out.append(pk('add',R_,N_,CIN))
    return out+s_writes(Q,tt)
def tile(Q,p,safe):
    q=1-p; out=[]
    for t in range(4):
        Dc=D[t&1]; Dn_=D[(t+1)&1]; tn=(t+1)%4; pp=p if t<3 else q
        tprev=(t+3)%4
        tr=[f"  v_exp_f32 v{T+i}, v{Dc+i}" for i in range(16)]
        if not safe: tr+=[f"  v_rcp_f32 v{R_}, v{DN}", f"  v_rcp_f32 v{R_+1}, v{DN+1}"]
        else: tr+=["  s_nop 0","  s_nop 0"]
        ms=mfmas(Dn_,tn,pp)
        side={}
        def at(pos,f): side.setdefault(pos,[]).append(f)
        def rd(tag,txt):
            def f():
                Q.issue(tag); return [txt]
            return f
        at(2,lambda: bd_reads(Q,(t+2)%4))
        at(3,lambda: cin_reads(Q,tprev))
        if t==1:
            at(12,lambda: Q.wait('desc')+[sdwa_add(AB,DR,L4,0), sdwa_add(AB+1,DR+1,L4,0)])
        if t==2:
            at(5,rd('a5',f"  ds_read_b32 v{A5[p]}, v{P32} offset:{(2+p)*32}"))
        if t==3:
            m=a5mask(p)
            at(6,lambda: Q.wait('a5')+[xaddr(p),m[0]])
            at(8,lambda: [xld(p,s_) for s_ in range(4)]+[m[1],m[2]])
        if t==3 and p==1:
            at(5,lambda: [f"  v_add_u32 v{P32}, 64, v{P32}", f"  v_add_u32 v{PD}, 256, v{PD}"])
        k=0
        for i,x in enumerate(tr):
            if k<5 and i==1+3*k:
                if k==0: out+=Q.wait(f'b5_{tn}')
                if k==1 and t==3: out.append('  s_waitcnt vmcnt(0)')
                out.append(ms[k]); k+=1
            for f in side.get(i,[]): out+=f()
            out.append(x)
        out+=fin_ops(Q,safe,tprev)
        if t==0:
            out+=[sdwa_add(AS,DR,L4,1), sdwa_add(AS+1,DR+1,L4,1)]
            Q.issue('desc'); out.append(f"  ds_read_b64 {v2(DR)}, v{PD} offset:{(1+p)*128}")
        out+= chain_safe(Dc) if safe else chain(Dc)
    return out
OOL=[]
def flush(Q,dr):
    out=[sdwa_add(AS,dr,L4,1), sdwa_add(AS+1,dr+1,L4,1)]
    for t in range(4):
        Q.issue('wr'); Q.issue('wr')
        out+=[f"  ds_write_b32 v{AS}, v{ACC[t]} offset:{128*t}", f"  ds_write_b32 v{AS+1}, v{ACC[t]+1} offset:{128*t}"]
    return out
def w2_loads():
    out=[f"  v_lshlrev_b32 v{AS}, 4, v1", f"  v_lshrrev_b32 v{AS+1}, 4, v1", f"  s_and_b32 s40, s{sWV}, 1", f"  v_lshlrev_b32 v{AS+1}, 3, v{AS+1}",
         f"  s_lshl_b32 s45, s40, 6", f"  s_add_u32 s45, s45, {WS_B2}", f"  s_lshl_b32 s40, s40, 13", f"  s_add_u32 s40, s40, {WS_W2}", f"  s_add_u32 s41, s40, 4096"]
    for cc in range(2):
        for s in range(4): out.append(f"  buffer_load_dwordx4 {q4('a',W2+16*cc+4*s)}, v{AS}, s[{sWS}:{sWS+3}], s{40+cc} offen offset:{1024*s}")
    for cc in range(2): out.append(f"  buffer_load_dwordx2 {v2(B2+2*cc)}, v{AS+1}, s[{sWS}:{sWS+3}], s45 offen offset:{32*cc}")
    out.append(f"  s_mov_b32 s{sLD}, 1")
    return out
def ftile(Q,p,ool):
    q=1-p; out=[]
    for t in range(4):
        Dc=D[t&1]; Dn_=D[(t+1)&1]; tn=(t+1)%4; pp=p if t<3 else q
        tprev=(t+3)%4
        tr=[f"  v_exp_f32 v{T+i}, v{Dc+i}" for i in range(16)]
        tr+=[f"  v_rcp_f32 v{R_}, v{DN}", f"  v_rcp_f32 v{R_+1}, v{DN+1}"]
        ms=mfmas(Dn_,tn,pp)
        side={}
        def at(pos,f): side.setdefault(pos,[]).append(f)
        def rd(tag,txt):
            def f():
                Q.issue(tag); return [txt]
            return f
        if t==0:
            if p==1:
                at(12,lambda: [f"  s_cmp_eq_u32 s{sLD}, 0"])
                at(14,lambda: [f"  s_cbranch_scc1 M_W2", "M_W2R:"])
                ool+=["M_W2:"]+w2_loads()+["  s_branch M_W2R"]
            at(15,lambda: [f"  s_bitcmp1_b32 s{sFL}, 0"])
        if t==1 and PR[0]:
            at(3,lambda: [f"  s_cmp_eq_u32 s{sCNT}, s{sTHR}"])
            at(5,lambda: [f"  s_cbranch_scc1 M_PR_{p}", f"M_PRR_{p}:"])
            ool+=[f"M_PR_{p}:", "  s_setprio 0", f"  s_cmp_eq_u32 s{sTHR}, {PR[2]}", f"  s_cbranch_scc1 M_PRR_{p}",
                  "  s_setprio 1", f"  s_cmp_eq_u32 s{sTHR}, {PR[1]}", f"  s_mov_b32 s{sTHR}, {PR[2]}", f"  s_cbranch_scc1 M_PRR_{p}",
                  "  s_setprio 2", f"  s_mov_b32 s{sTHR}, {PR[1]}", f"  s_branch M_PRR_{p}"]
        if t==2:
            def c1():
                w=Q.wait('desc')
                Q.begin()
                b=[f"M_C1_{p}:", sdwa_add(AB,DRR[q],L4,0), sdwa_add(AB+1,DRR[q]+1,L4,0)]
                for tt in range(4): b+=bd_reads(Q,tt)
                Q.end()
                ool.extend(b+[f"  s_branch M_C1R_{p}"])
                return w+[f"  s_cbranch_scc1 M_C1_{p}", f"M_C1R_{p}:"]
            at(1,lambda: [f"  s_bitcmp1_b32 s{sFL}, 1"])
            at(2,c1)
            at(PL[0],rd('a5',f"  ds_read_b32 v{A5[p]}, v{P32} offset:{(2+p)*32}"))
            at(PL[1],lambda: [f"  s_lshr_b32 s{sFL}, s{sFL}, 1"])
            at(PL[1]+1,lambda: [f"  s_sub_u32 s{sCNT}, s{sCNT}, 1"])
            if p==1:
                at(PL[2],lambda: [f"  v_add_u32 v{P32}, 64, v{P32}"])
                at(PL[2]+1,lambda: [f"  v_add_u32 v{PD}, 256, v{PD}"])
        if t==3:
            m=a5mask(p)
            at(PL[3],lambda: Q.wait('a5')+[xaddr(p)])
            for s_ in range(4): at(PL[4+s_],(lambda s_: lambda: [xld(p,s_)])(s_))
            at(PL[8],lambda: [m[0]]); at(PL[9],lambda: [m[1]]); at(PL[10],lambda: [m[2]])
            at(PL[11],lambda: [f"  s_cmp_eq_u32 s{sCNT}, 0"])
        tr+=[pk('add',CHK,CHK,DN), pk('fma',ACC[tprev],N_,R_,ACC[tprev])]+chain(Dc)
        if t==0:
            def c2():
                Q.begin()
                b=[f"M_C2_{p}:", f"  v_cmp_eq_u32 vcc, v{DRR[q]}, v{DRR[p]}", f"  v_cmp_eq_u32_e64 s[40:41], v{DRR[q]+1}, v{DRR[p]+1}"]+flush(Q,DRR[q])
                Q.end()
                for tt in range(4):
                    b+=[f"  v_cndmask_b32 v{ACC[tt]}, 0, v{ACC[tt]}, vcc", f"  v_cndmask_b32_e64 v{ACC[tt]+1}, 0, v{ACC[tt]+1}, s[40:41]"]
                ool.extend(b+[f"  s_branch M_C2R_{p}"])
                return [f"  s_cbranch_scc1 M_C2_{p}", f"M_C2R_{p}:"]
            at(20,c2)
            at(22,rd('desc',f"  ds_read_b64 {v2(DRR[q])}, v{PD} offset:{(1+p)*128}"))
        k=0
        for i,x in enumerate(tr):
            if k<5 and i==1+3*k:
                if k==0: out+=Q.wait(f'b5_{tn}')
                if k==1 and t==3: out.append('  s_waitcnt vmcnt(0)')
                out.append(ms[k]); k+=1
            for f in side.get(i,[]): out+=f()
            out.append(x)
    return out
def ffinish(p):
    Q=DSQ()
    return [f"  v_rcp_f32 v{R_}, v{DN}", f"  v_rcp_f32 v{R_+1}, v{DN+1}", pk('add',CHK,CHK,DN), pk('fma',ACC[3],N_,R_,ACC[3])]+flush(Q,DRR[p])
def fastloop():
    Q=DSQ()
    ftile(Q,0,[]); ftile(Q,1,[])
    ool=[]
    b0=ftile(Q,0,ool); b1=ftile(Q,1,ool)
    L=b0+["  s_cbranch_scc1 M_FFIN0"]+b1+["  s_cbranch_scc0 M_LOOPF"]
    if EXP&2: L=[l for l in L if not l.strip().startswith(('ds_','s_waitcnt'))]
    if EXP&4: L=[l for l in L if not l.strip().startswith(('buffer_','s_waitcnt vm','s_mov_b32 m0','s_add_u32 m0'))]
    if EXP&8: L=[l for l in L if not l.strip().startswith(('v_mad','v_add_u32','v_cmp','v_cnd'))]
    if EXP&512: L=[l for l in L if not l.strip().startswith(('s_cbranch_scc1 M_C1'))]
    if EXP&1024: L=[l for l in L if not l.strip().startswith(('s_cbranch_scc1 M_C2'))]
    if EXP&2048: L=[l for l in L if not l.strip().startswith(('s_bitcmp','s_cbranch_scc1 M_W2','s_cmp_eq_u32 s49','s_lshr'))]
    L=fix(L)
    if ALIGN==1: L=align8(L)
    fix(L+L, check_only=True, name='loopF')
    return [".p2align 6","M_LOOPF:"]+L+fix(ffinish(1))+["  s_branch M_DONE","M_FFIN0:"]+fix(ffinish(0))+["  s_branch M_DONE"]+fix(ool)
def finish(safe):
    Q=DSQ()
    out=cin_reads(Q,3)
    if not safe: out+=[f"  v_rcp_f32 v{R_}, v{DN}", f"  v_rcp_f32 v{R_+1}, v{DN+1}"]
    return out+fin_ops(Q,safe,3)
def isize(l):
    c=Ins(l)
    if c.kind=='none': return 0
    if c.kind in('mfma','ds','vmem'): return 8
    lit=any(re.match(r'^(0x[0-9a-f]+|\d+)$',o) and (int(o,0)>64) for o in c.ops)
    if c.kind=='salu':
        if c.mn.startswith(('s_waitcnt','s_nop','s_cbranch','s_branch')): return 4
        return 8 if lit else 4
    if c.mn.startswith(('v_pk_','v_mad_','v_fma')) or c.mn.endswith(('_e64','_sdwa')): return 8
    return 8 if lit else 4
def align8(L):
    out=[]; off=0
    for l in L:
        n=isize(l)
        if n==8 and off%8==4:
            done=False
            for i in range(len(out)-1,-1,-1):
                if isize(out[i])==8: break
                c=Ins(out[i])
                if c.kind=='valu':
                    out[i]=out[i].replace(c.mn,c.mn+'_e64',1); done=True; break
            if not done: out.append("  s_nop 0")
            off+=4
        out.append(l); off+=n
    return out
def mainloop(safe):
    tag='S' if safe else 'F'
    Q=DSQ()
    tile(Q,0,safe); tile(Q,1,safe)
    b0=tile(Q,0,safe); b1=tile(Q,1,safe)
    L=b0+[f"  s_sub_u32 s{sCNT}, s{sCNT}, 1", f"  s_cmp_eq_u32 s{sCNT}, 0", f"  s_cbranch_scc1 M_FIN{tag}"]
    L+=b1+[f"  s_sub_u32 s{sCNT}, s{sCNT}, 1", f"  s_cmp_lg_u32 s{sCNT}, 0", f"  s_cbranch_scc1 M_LOOP{tag}"]
    if EXP&2: L=[l for l in L if not l.strip().startswith(('ds_','s_waitcnt'))]
    if EXP&4: L=[l for l in L if not l.strip().startswith(('buffer_','s_waitcnt vm','s_mov_b32 m0','s_add_u32 m0'))]
    if EXP&16: L=[l for l in L if not (l.strip().startswith(('ds_read_b32','ds_write_b32')) and f', v{P32} ' not in l)]
    if EXP&32: L=[l for l in L if not l.strip().startswith(('ds_read_b128 a'))]
    if EXP&64: L=[l for l in L if not l.strip().startswith(('s_waitcnt lgkm'))]
    if EXP&128: L=[l for l in L if not l.strip().startswith(('ds_write_b32'))]
    if EXP&256: L=[l for l in L if 'sdwa' not in l]
    if EXP&8: L=[l for l in L if not l.strip().startswith(('v_mad','v_add_u32','v_cmp','v_cnd'))]
    L=fix(L)
    if ALIGN==1: L=align8(L)
    if ALIGN==2: L=align8([re.sub(r'v_exp_f32 ','v_exp_f32_e64 ',l) for l in L])
    fix(L+L, check_only=True, name='loop'+tag)
    L=[".p2align 6", f"M_LOOP{tag}:"]+L+[f"M_FIN{tag}:"]+fix(finish(safe))+["  s_branch M_DONE"]
    return L
def fill(L, base, nbytes, quad, tmp=2):
    n=nbytes//16; full=n//512; rem=n%512
    L.append(f"  v_add_u32 v{tmp}, {base}, v3")
    for i in range(full): L.append(f"  ds_write_b128 v{tmp}, {q4('v',quad)} offset:{8192*i}")
    if rem:
        L.append(f"  v_cmp_gt_u32 vcc, {rem}, v0")
        L.append(f"  s_mov_b64 exec, vcc")
        L.append(f"  ds_write_b128 v{tmp}, {q4('v',quad)} offset:{8192*full}")
        L.append(f"  s_mov_b64 exec, -1")
RC=D[0]; RK=T; OFS=20; REM=20; VOF=26
def round_head(L, first):
    A=L.append
    A(f"  v_lshrrev_b32 v2, 3, v0")
    A(f"  v_lshlrev_b32 v30, 4, v2")
    A(f"  s_mul_i32 s40, s{sBK}, {OFS_RS}")
    A(f"  s_add_u32 s40, s40, {WS_OFF}")
    A(f"  buffer_load_dwordx4 {q4('v',OFS)}, v30, s[{sWS}:{sWS+3}], s40 offen")
    if first:
        A(f"  v_lshrrev_b32 v17, 5, v1")
        A(f"  v_lshlrev_b32 v{H64}, 6, v17")
        A(f"  v_lshrrev_b32 v31, 3, v1")
        A(f"  v_and_b32 v{XO}, 7, v1")
        A(f"  v_xor_b32 v{XO}, v{XO}, v31")
        A(f"  v_lshlrev_b32 v{XO}, 4, v{XO}")
        A(f"  v_lshl_add_u32 v{XO}, v31, 7, v{XO}")
        A(f"  s_lshl_b32 s45, s{sWV}, 10")
        A(f"  s_add_u32 m0, s45, {XR}")
        A(f"  s_lshl_b32 s44, s{sN0}, 7")
        A(f"  s_add_u32 s45, s45, s44")
        A(f"  s_lshl_b32 s44, s{sWV}, 11")
        A(f"  s_add_u32 s44, s44, {WST}")
        A(f"  s_cmp_lt_u32 s{sWV}, 5")
        A(f"  s_cselect_b32 s45, s45, 0x40000000")
        A(f"  s_cselect_b32 m0, m0, s44")
        A(f"  v_add_u32 v{XO}, s45, v{XO}")
        A(f"  v_lshlrev_b32 v{XO+1}, 4, v1")
        A(f"  buffer_load_dwordx4 v{XO}, s[{sX}:{sX+3}], 0 offen lds")
        A(f"  s_and_b32 s43, s{sWV}, 3")
        A(f"  s_lshl_b32 s44, s43, 12")
        A(f"  s_add_u32 s44, s44, {WS_W1B}")
        A(f"  v_and_b32 v31, 31, v1")
        A(f"  v_lshlrev_b32 v31, 2, v31")
        A(f"  s_lshl_b32 s45, s43, 7")
        A(f"  s_add_u32 s45, s45, {WS_B1}")
        A(f"  s_cmp_lt_u32 s{sWV}, 4")
        A(f"  s_cselect_b64 exec, -1, 1")
        for s_ in range(4): A(f"  buffer_load_dwordx4 {q4('a',X[1]+4*s_)}, v{XO+1}, s[{sWS}:{sWS+3}], s44 offen offset:{1024*s_}")
        A(f"  buffer_load_dword v{ACC[0]}, v31, s[{sWS}:{sWS+3}], s45 offen")
        A(f"  s_mov_b64 exec, -1")
        A(f"  s_mov_b32 s44, {WS_CST}")
        A(f"  buffer_load_dwordx4 {q4('v',B2)}, v{XO+1}, s[{sWS}:{sWS+3}], s44 offen")
        ts(L,'iss1')
    A(f"  v_lshlrev_b32 v3, 4, v0")
    for i in range(4): A(f"  v_mov_b32 v{T+i}, 0")
    for i in range(4): A(f"  v_mov_b32 v{T+4+i}, 0x8000")
    for i in range(4): A(f"  v_mov_b32 v{T+8+i}, {DUMMY}")
    fill(L, SORT, SORTN, T+4)
    if first: fill(L, Z0, GB-Z0, T)
    else:
        fill(L, S_+41*RS, 31*RS, T)
        fill(L, CNT, GB-CNT, T)
    fill(L, DESC, DESCN, T+8)
    if first: ts(L,'fill')
    A(f"  v_bfe_u32 v2, v0, 3, 3")
    A(f"  v_lshlrev_b32 v2, 5, v2")
    A(f"  v_add_u32 v2, s{sWV}, v2")
    A(f"  v_mul_u32_u24 v30, 20000, v2")
    A(f"  v_and_b32 v2, 7, v0")
    A(f"  v_lshl_add_u32 v30, v2, 4, v30")
    A(f"  v_lshlrev_b32 v2, 1, v2")
    A(f"  v_sub_u32 v31, s{sCAP}, v2")
    A(f"  v_add_u32 v2, s{sRB}, v2")
    A(f"  s_lshl_b32 s40, s{sRB}, 3")
    A(f"  v_mov_b32 v{CIN}, 0")
    for j in range(4):
        if j==0: A(f"  s_waitcnt vmcnt({7 if first else 0})")
        A(f"  v_and_b32 v{VOF+j}, 0xffff, v{OFS+j}")
        A(f"  v_lshrrev_b32 v{REM+j}, 16, v{OFS+j}")
        A(f"  v_lshl_add_u32 v{VOF+j}, v{VOF+j}, 3, v30")
        A(f"  v_sub_u32 v{REM+j}, v{REM+j}, v2")
        A(f"  v_max_i32 v{CIN}, v{CIN}, v{REM+j}")
        A(f"  v_min_i32 v{REM+j}, v{REM+j}, v31")
        for u in range(2):
            for i in range(2):
                k=sMK+2*(4*j+2*u+i)
                A(f"  v_cmp_lt_i32_e64 s[{k}:{k+1}], {16*u+i}, v{REM+j}")
    if first: ts(L,'offs')
    A(f"  v_mov_b32 v2, 0x40000000")
    for j in range(4):
        for u in range(2):
            k=sMK+2*(4*j+2*u)
            A(f"  v_cndmask_b32_e64 v{30+u}, v2, v{VOF+j}, s[{k}:{k+1}]")
            A(f"  buffer_load_dwordx4 {q4('v',RC+8*j+4*u)}, v{30+u}, s[{sWS}:{sWS+3}], s40 offen offset:{128*u}")
        if j<3: A(f"  s_add_u32 s40, s40, {8*20000}")
    if first:
        A(f"  s_lshl_b32 s40, s{sWV}, 11")
        A(f"  s_add_u32 s44, s40, {WST}")
        A(f"  s_add_u32 s40, s40, {WS_W1A}")
        A(f"  s_mov_b32 m0, s44")
        for j in range(2): A(f"  buffer_load_dwordx4 v{XO+1}, s[{sWS}:{sWS+3}], s40 offen offset:{1024*j} lds")
        ts(L,'iss2')
        A(f"  v_and_b32 v3, 1, v1")
        A(f"  v_bfe_u32 v30, v1, 2, 1")
        A(f"  v_lshl_or_b32 v30, v30, 1, v3")
        A(f"  v_lshlrev_b32 v31, 1, v17")
        A(f"  v_mov_b32 v{REC+2}, 0x3f803f80")
        A(f"  v_cmp_eq_u32 vcc, v30, v31")
        A(f"  v_cndmask_b32 v{OH}, 0, v{REC+2}, vcc")
        A(f"  v_add_u32 v31, 1, v31")
        A(f"  v_cmp_eq_u32 vcc, v30, v31")
        A(f"  v_cndmask_b32 v{OH+1}, 0, v{REC+2}, vcc")
        A(f"  s_waitcnt vmcnt(10)")
        for t in range(4):
            A(f"  v_mov_b32 v{B5[t]}, v{B2+t}")
            A(f"  v_mov_b32 v{B5[t]+3}, 0")
        ts(L,'bin')
    else:
        A(f"  s_waitcnt vmcnt(0)")
def kernel2():
    L=[]; A=L.append
    A("main_kernel:")
    A("  s_cmp_ge_u32 s2, 256")
    A("  s_cbranch_scc1 M_EXIT")
    A("  s_load_dwordx2 s[52:53], s[0:1], 80")
    A("  s_load_dwordx2 s[54:55], s[0:1], 0")
    A("  s_load_dwordx2 s[46:47], s[0:1], 64")
    A("  v_and_b32 v1, 63, v0")
    A("  v_lshrrev_b32 v2, 6, v0")
    A(f"  v_readfirstlane_b32 s{sWV}, v2")
    A(f"  s_and_b32 s{sBK}, s2, 7")
    A(f"  s_lshl_b32 s{sBK}, s{sBK}, 5")
    A(f"  s_lshr_b32 s{sN0}, s2, 3")
    A(f"  s_or_b32 s{sBK}, s{sBK}, s{sN0}")
    A(f"  s_mul_i32 s{sN0}, s{sBK}, 625")
    A(f"  s_add_u32 s{sNN}, s{sN0}, 640")
    A(f"  s_add_u32 s{sN0}, s{sN0}, 15")
    A(f"  s_lshr_b32 s{sN0}, s{sN0}, 4")
    A(f"  s_lshr_b32 s{sNN}, s{sNN}, 4")
    A(f"  s_sub_u32 s{sNN}, s{sNN}, s{sN0}")
    A(f"  s_mov_b32 s{sRB}, 0")
    A(f"  s_mov_b32 s{sMODE}, 0")
    A(f"  s_mov_b32 s{s128}, 128")
    A(f"  s_mov_b32 s{sLD}, 0")
    A(f"  s_mov_b32 s{sWL}, 0")
    A(f"  s_mov_b32 s{sCAP}, {CAP}")
    A(f"  s_mov_b32 s{sTH}, 0x5f800000")
    A(f"  v_and_b32 v2, 31, v1")
    A(f"  v_lshlrev_b32 v{L4}, 2, v2")
    A(f"  v_add_u32 v{L4}, {BD}, v{L4}")
    ts(L,0,True); ts(L,'start')
    A("  s_waitcnt lgkmcnt(0)")
    srd(L,sWS,52,WS_SIZE); srd(L,sX,54,1280000); srd(L,sOUT,46,1280000)
    round_head(L,True)
    A("  s_waitcnt lgkmcnt(0)")
    A("  s_barrier")
    ts(L,'bar1')
    A(f"  s_cmp_ge_u32 s{sWV}, 4")
    A(f"  s_cbranch_scc1 M_BDONE")
    A(f"  v_and_b32 v2, 7, v1")
    A(f"  v_lshlrev_b32 v3, 2, v17")
    A(f"  v_xor_b32 v2, v2, v3")
    A(f"  v_and_b32 v3, 31, v1")
    A(f"  v_lshlrev_b32 v3, 7, v3")
    A(f"  v_add_u32 v3, {XR}, v3")
    for s_ in range(4):
        A(f"  v_xor_b32 v{REC+s_}, {s_}, v2")
        A(f"  v_lshl_add_u32 v{REC+s_}, v{REC+s_}, 4, v3")
        A(f"  ds_read_b128 {q4('a',X[0]+4*s_)}, v{REC+s_}")
    for s_ in range(4): A(f"  ds_read_b128 {q4('a',W2+4*s_)}, v{REC+s_} offset:4096")
    A(f"  s_mov_b32 s46, {NLOG2E}")
    A(f"  s_lshl_b32 s47, s{sWV}, 7")
    A(f"  v_mul_u32_u24 v30, {4*RS}, v17")
    A(f"  v_add3_u32 v30, v30, v{L4}, s47")
    for s_ in range(4):
        c = "0" if s_==0 else f"v[{T}:{T+15}]"
        A(f"  s_waitcnt lgkmcnt({7-s_})")
        A(f"  v_mfma_f32_32x32x16_bf16 v[{T}:{T+15}], {q4('a',X[0]+4*s_)}, {q4('a',X[1]+4*s_)}, {c}")
    for s_ in range(4):
        c = "0" if s_==0 else f"a[0:15]"
        A(f"  s_waitcnt lgkmcnt({3-s_})")
        A(f"  v_mfma_f32_32x32x16_bf16 a[0:15], {q4('a',W2+4*s_)}, {q4('a',X[1]+4*s_)}, {c}")
    for r in range(20):
        z=T+r if r<16 else T+r-16
        if r>=16: A(f"  v_accvgpr_read_b32 v{z}, a{r-16}")
        A(f"  v_fma_f32 v{z}, v{z}, s46, v{ACC[0]}")
        A(f"  v_cvt_pk_bf16_f32 v{REC+(r&1)}, 0, v{z}")
        A(f"  v_sub_f32 v{REC+(r&1)}, v{z}, v{REC+(r&1)}")
        A(f"  v_cvt_pk_bf16_f32 v{z}, v{REC+(r&1)}, v{z}")
        A(f"  ds_write_b32 v30, v{z} offset:{(8*(r>>2)+(r&3))*RS}")
    A("M_BDONE:")
    ts(L,'bdone')
    A(f"  s_lshl_b32 s40, s{sN0}, 2")
    A(f"  s_sub_u32 s40, {CNT}, s40")
    A(f"  v_mov_b32 v2, 1")
    A(f"  v_mov_b32 v31, {MORE}")
    A(f"  v_cmp_lt_i32 vcc, s{sCAP}, v{CIN}")
    A(f"  s_mov_b64 exec, vcc")
    A(f"  ds_write_b32 v31, v2")
    for j in range(4):
        for u in range(2):
            A(f"  s_waitcnt vmcnt({9-(2*j+u)})")
            for i in range(2):
                k=4*j+2*u+i; r=RC+8*j+4*u+2*i
                A(f"  s_mov_b64 exec, s[{sMK+2*k}:{sMK+2*k+1}]")
                A(f"  v_lshl_add_u32 v{r+1}, v{r+1}, 2, s40")
                A(f"  ds_add_rtn_u32 v{RK+k}, v{r+1}, v2")
    A(f"  s_mov_b64 exec, -1")
    A(f"  s_lshl_b32 s41, s{sWV}, 2")
    A(f"  v_bfe_u32 v30, v1, 2, 1")
    A(f"  v_and_b32 v31, 1, v1")
    A(f"  v_lshl_or_b32 v30, v30, 1, v31")
    A(f"  v_add_u32 v{P32}, s41, v30")
    A(f"  v_bfe_u32 v30, v1, 3, 2")
    A(f"  v_bfe_u32 v31, v1, 1, 1")
    A(f"  v_lshl_or_b32 v30, v31, 2, v30")
    A(f"  v_lshlrev_b32 v{DR+1}, 2, v30")
    A(f"  v_add_u32 v{DR+1}, {SORT}, v{DR+1}")
    A(f"  s_lshl_b32 s41, s{sWV}, 4")
    A(f"  s_add_u32 s41, s41, {DESC}")
    A(f"  v_lshrrev_b32 v30, 5, v1")
    A(f"  v_lshl_add_u32 v{PD}, v30, 3, s41")
    A(f"  v_lshlrev_b32 v3, 2, v1")
    A(f"  v_add_u32 v3, {CNT}, v3")
    A("  s_waitcnt lgkmcnt(0)")
    A("  s_barrier")
    ts(L,'bar2')
    A(f"  ds_read_b32 v17, v3")
    A(f"  v_mov_b32 v31, {MORE}")
    A(f"  ds_read_b32 v31, v31")
    A("  s_waitcnt lgkmcnt(1)")
    A(f"  v_add_u32 v30, 7, v17")
    A(f"  v_lshrrev_b32 v30, 3, v30")
    A(f"  v_mov_b32 v2, v30")
    scan64(L,2)
    A(f"  v_readlane_b32 s{sNT}, v2, 63")
    A(f"  v_sub_u32 v2, v2, v30")
    A(f"  v_mov_b32 v{REC}, {SORT}")
    A(f"  v_lshl_add_u32 v{REC}, v2, 5, v{REC}")
    A(f"  ds_write_b32 v3, v{REC} offset:{GB-CNT}")
    A(f"  s_add_u32 s{sNT}, s{sNT}, 31")
    A(f"  s_lshr_b32 s{sNT}, s{sNT}, 5")
    A(f"  s_max_u32 s42, s{sNT}, 1")
    A(f"  v_cvt_f32_u32 v{REC+3}, s42")
    A(f"  v_rcp_f32 v{REC+3}, v{REC+3}")
    A("  s_waitcnt lgkmcnt(0)")
    A(f"  v_readfirstlane_b32 s{sMORE}, v31")
    A(f"  s_cmp_gt_u32 s{sNT}, {LMAX}")
    A(f"  s_cselect_b32 s42, 1, s{sMORE}")
    A(f"  s_andn2_b32 s42, s42, s{sMODE}")
    A(f"  s_cbranch_scc1 M_SLOW")
    for k in range(16):
        r=RC+2*k
        A(f"  s_mov_b64 exec, s[{sMK+2*k}:{sMK+2*k+1}]")
        A(f"  ds_read_b32 v{r+1}, v{r+1} offset:{GB-CNT}")
    A(f"  s_mov_b64 exec, -1")
    A(f"  v_mul_f32 v{REC+3}, 0x47800000, v{REC+3}")
    A(f"  v_cvt_u32_f32 v{REC+3}, v{REC+3}")
    A(f"  v_add_u32 v{REC+3}, 1, v{REC+3}")
    A(f"  s_lshl_b32 s43, s{sNT}, 5")
    A(f"  v_mad_u32_u24 v{P32}, v{P32}, s43, v{DR+1}")
    A(f"  v_mul_u32_u24 v{AB}, v2, v{REC+3}")
    A(f"  v_lshrrev_b32 v{AB}, 16, v{AB}")
    A(f"  v_add3_u32 v{AB+1}, v2, v30, -1")
    A(f"  v_mul_u32_u24 v{AB+1}, v{AB+1}, v{REC+3}")
    A(f"  v_lshrrev_b32 v{AB+1}, 16, v{AB+1}")
    A(f"  v_add_u32 v{DR}, v2, v30")
    A(f"  s_sub_u32 s44, 0, s{sNT}")
    A(f"  v_mad_i32_i24 v{DR}, v{AB+1}, s44, v{DR}")
    A(f"  v_lshrrev_b32 v{DR+1}, 2, v{AB+1}")
    A(f"  v_cmp_eq_u32_e64 s[44:45], s{sWV}, v{DR+1}")
    A(f"  v_cmp_lt_u32 vcc, 0, v30")
    A(f"  v_lshlrev_b32_e64 v{DR}, v{DR}, 1")
    A(f"  s_and_b64 s[44:45], s[44:45], vcc")
    A(f"  v_sub_u32 v{AB+1}, v{AB+1}, v{AB}")
    A(f"  v_cndmask_b32_e64 v{CIN}, 0, v{DR}, s[44:45]")
    scan64(L,CIN,'v_or_b32_dpp')
    A(f"  v_readlane_b32 s{sFL}, v{CIN}, 63")
    A(f"  v_mul_u32_u24 v{REC+1}, {RS}, v1")
    A(f"  v_add_u32 v{REC}, s{sWV}, v2")
    A(f"  v_cndmask_b32 v{AB+1}, 0, v{AB+1}, vcc")
    A(f"  v_lshl_or_b32 v{AB+1}, v{AB+1}, 8, v{AB}")
    A(f"  v_subrev_u32 v30, s{sWV}, v30")
    A(f"  s_lshl_b32 s44, s{sNT}, 7")
    A(f"  s_sub_u32 s44, 4, s44")
    A(f"  s_mov_b32 s45, {RS}")
    A(f"  v_mov_b32 v{AS}, {40*RS+S_-BD}")
    A(f"  v_add_u32 v{AS+1}, {S_-BD}, v{REC+1}")
    A("M_DESC:")
    A(f"  v_cmp_lt_i32 vcc, 0, v30")
    A(f"  s_cbranch_vccz M_DESCD")
    A(f"  s_mov_b64 exec, vcc")
    A(f"  v_mul_u32_u24 v{REC+2}, v{REC}, v{REC+3}")
    A(f"  v_lshrrev_b32 v{REC+2}, 16, v{REC+2}")
    A(f"  v_lshlrev_b32 v{DR}, 7, v{REC}")
    A(f"  v_mad_i32_i24 v{DR}, v{REC+2}, s44, v{DR}")
    A(f"  v_cmp_eq_u32 vcc, v{REC+2}, v{AB}")
    A(f"  v_mad_u32_u24 v{DR+1}, v{REC+2}, s45, v{AS}")
    A(f"  v_add_u32 v{DR}, {DESC}, v{DR}")
    A(f"  v_cndmask_b32 v{DR+1}, v{DR+1}, v{AS+1}, vcc")
    A(f"  v_lshl_or_b32 v{DR+1}, v{DR+1}, 16, v{REC+1}")
    A(f"  ds_write_b32 v{DR}, v{DR+1}")
    A(f"  v_add_u32 v{REC}, 8, v{REC}")
    A(f"  v_add_u32 v30, -8, v30")
    A(f"  s_branch M_DESC")
    A("M_DESCD:")
    A(f"  s_mov_b64 exec, -1")
    A(f"  s_cmp_lg_u32 s{sWV}, 0")
    A(f"  s_cbranch_scc1 M_NODEG")
    A(f"  v_add_u32 v3, {DEG-CNT}, v3")
    A(f"  ds_add_u32 v3, v17")
    A(f"  ds_write_b32 v3, v{AB+1} offset:{CAR-DEG}")
    A("M_NODEG:")
    A("  s_waitcnt lgkmcnt(0)")
    for k in range(16):
        r=RC+2*k
        A(f"  s_mov_b64 exec, s[{sMK+2*k}:{sMK+2*k+1}]")
        A(f"  v_lshl_add_u32 v{r+1}, v{RK+k}, 2, v{r+1}")
        A(f"  ds_write_b32 v{r+1}, v{r}")
    A(f"  s_mov_b64 exec, -1")
    A(f"  s_mov_b32 s{sCNT}, s{sNT}")
    if EXP&1:
        A(f"  s_cmp_ge_u32 s{sWV}, 4")
        A(f"  s_cselect_b32 s{sCNT}, 0, s{sCNT}")
    A(f"  v_mov_b32 v{CHK}, 0")
    A(f"  v_mov_b32 v{CHK+1}, 0")
    A(f"  v_mov_b32 v{N_}, 0")
    A(f"  v_mov_b32 v{N_+1}, 0")
    A(f"  v_mov_b32 v{DN}, 1.0")
    A(f"  v_mov_b32 v{DN+1}, 1.0")
    A(f"  v_add_u32 v{AS}, {40*RS+S_-BD}, v{L4}")
    A(f"  v_add_u32 v{AS+1}, {40*RS+S_-BD}, v{L4}")
    A(f"  v_mov_b32 v{A5[0]+3}, 0")
    A(f"  v_mov_b32 v{A5[1]+3}, 0")
    for t in range(4):
        A(f"  v_mov_b32 v{ACC[t]}, 0")
        A(f"  v_mov_b32 v{ACC[t]+1}, 0")
    A(f"  v_lshlrev_b32 v30, 4, v1")
    A(f"  v_add_u32 v30, {WST}, v30")
    A("  s_waitcnt vmcnt(0) lgkmcnt(0)")
    A("  s_barrier")
    if PR[0]:
        A("  s_setprio 3")
        A(f"  s_mov_b32 s{sTHR}, {PR[0]}")
    ts(L,'bar3')
    A(f"  ds_read_b32 v{A5[0]}, v{P32}")
    A(f"  ds_read_b32 v{A5[1]}, v{P32} offset:32")
    A(f"  ds_read_b64 {v2(DR)}, v{PD}")
    A("  s_waitcnt lgkmcnt(2)")
    A(xaddr(0))
    for s_ in range(4): A(xld(0,s_))
    A("  s_waitcnt lgkmcnt(1)")
    A(xaddr(1,XO+1))
    for s_ in range(4): A(xld(1,s_,XO+1))
    A("  s_waitcnt lgkmcnt(0)")
    L+=[sdwa_add(AB,DR,L4,0), sdwa_add(AB+1,DR+1,L4,0)]
    L+=a5mask(0)+a5mask(1)
    Q=DSQ()
    for tt in range(4): L+=bd_reads(Q,tt)
    A(f"  s_cmp_lg_u32 s{sWL}, 0")
    A(f"  s_cbranch_scc1 M_NOW")
    for i in range(16):
        A(f"  ds_read_b128 {q4('a',W+4*i)}, v30 offset:{i*1024}")
    A(f"  s_mov_b32 s{sWL}, 1")
    A("M_NOW:")
    A(f"  s_cmp_eq_u32 s{sCNT}, 0")
    A(f"  s_cbranch_scc1 M_DONE")
    A("  s_waitcnt vmcnt(4) lgkmcnt(0)")
    L+=mfmas(D[0],0,0)
    ts(L,'loop')
    A("  s_nop 7"); A("  s_nop 3")
    A(f"  s_cmp_lg_u32 s{sMODE}, 0")
    A(f"  s_cbranch_scc1 M_LOOPS")
    L=fix(L)
    L+=fastloop()
    L+=mainloop(True)
    E=[]; A=E.append
    A("M_DONE:")
    A(f"  s_cmp_lg_u32 s{sLD}, 0")
    A(f"  s_cbranch_scc1 M_DONE2")
    E+=w2_loads()
    A("M_DONE2:")
    A(f"  v_add_f32 v{CHK}, v{CHK}, v{CHK+1}")
    A(f"  v_mov_b32 v2, 1")
    A(f"  v_mov_b32 v31, {OVF}")
    A(f"  v_cmp_ngt_f32 vcc, s{sTH}, v{CHK}")
    A(f"  s_mov_b64 exec, vcc")
    A(f"  ds_write_b32 v31, v2")
    A(f"  s_mov_b64 exec, -1")
    A(f"  v_and_b32 v30, 15, v1")
    A(f"  s_lshr_b32 s41, s{sWV}, 1")
    A(f"  s_lshl_b32 s41, s41, 4")
    A(f"  v_add_u32 v30, s41, v30")
    A(f"  v_lshlrev_b32 v2, 2, v30")
    A(f"  v_add_u32 v2, {DEG}, v2")
    A(f"  ds_read_b32 v{DR}, v2 offset:{CAR-DEG}")
    A(f"  ds_read_b32 v2, v2")
    A(f"  v_lshrrev_b32 v17, 4, v1")
    A(f"  v_lshlrev_b32 v{CIN}, 5, v17")
    A(f"  v_add_u32 v{CIN}, {S_}, v{CIN}")
    A(f"  s_mov_b32 s45, {RS}")
    A(f"  v_mad_u32_u24 v3, v30, s45, v{CIN}")
    A(f"  v_add_u32 v{CIN}, {40*RS}, v{CIN}")
    A("  s_waitcnt lgkmcnt(0)")
    A(f"  v_and_b32 v{AB}, 0xff, v{DR}")
    A(f"  v_lshrrev_b32 v{DR}, 8, v{DR}")
    A(f"  v_mad_u32_u24 v{AB}, v{AB}, s45, v{CIN}")
    A("  s_waitcnt vmcnt(0)")
    ts(E,'done')
    A("  s_barrier")
    ts(E,'bar4')
    A(f"  s_cmp_ge_u32 s{sWV}, 6")
    A(f"  s_cbranch_scc1 M_EPD")
    for s in range(4):
        A(f"  ds_read_b128 {q4('v',D[0]+8*s)}, v3 offset:{128*s}")
        A(f"  ds_read_b128 {q4('v',D[0]+8*s+4)}, v3 offset:{128*s+16}")
    A("M_CARRY:")
    A(f"  v_cmp_lt_i32 vcc, 0, v{DR}")
    A(f"  s_cbranch_vccz M_CARRYD")
    A(f"  v_add_u32 v{AB}, {RS}, v{AB}")
    A(f"  v_add_u32 v{DR}, -1, v{DR}")
    A(f"  v_cndmask_b32 v{AB+1}, v{CIN}, v{AB}, vcc")
    for hf in range(2):
        for s in range(2):
            A(f"  ds_read_b128 {q4('v',T+8*s)}, v{AB+1} offset:{128*(2*hf+s)}")
            A(f"  ds_read_b128 {q4('v',T+8*s+4)}, v{AB+1} offset:{128*(2*hf+s)+16}")
        for i in range(8):
            if i%2==0: A(f"  s_waitcnt lgkmcnt({3-i//2})")
            A(pk('add',D[0]+16*hf+2*i,D[0]+16*hf+2*i,T+2*i))
    A(f"  s_branch M_CARRY")
    A("M_CARRYD:")
    ts(E,'carry')
    A(f"  s_cmp_lg_u32 s{sMORE}, 0")
    A(f"  s_cbranch_scc1 M_FOLD")
    A(f"  s_mov_b32 s40, 0xffff0000")
    A("  s_waitcnt lgkmcnt(0)")
    EAC=[18,22]
    for s in range(4):
        b=D[0]+8*s; hi=T+8*(s&1); lo=hi+4
        for j in range(4): A(f"  v_cvt_pk_bf16_f32 v{hi+j}, v{b+2*j}, v{b+2*j+1}")
        for cc in range(2):
            c="0" if s==0 else q4('v',EAC[cc])
            A(f"  v_mfma_f32_16x16x32_bf16 {q4('v',EAC[cc])}, {q4('a',W2+16*cc+4*s)}, {q4('v',hi)}, {c}")
        for j in range(4):
            A(f"  v_lshlrev_b32 v{REC}, 16, v{hi+j}")
            A(f"  v_and_b32 v{REC+1}, s40, v{hi+j}")
            A(f"  v_sub_f32 v{b+2*j}, v{b+2*j}, v{REC}")
            A(f"  v_sub_f32 v{b+2*j+1}, v{b+2*j+1}, v{REC+1}")
        for j in range(4): A(f"  v_cvt_pk_bf16_f32 v{lo+j}, v{b+2*j}, v{b+2*j+1}")
        for cc in range(2):
            A(f"  v_mfma_f32_16x16x32_bf16 {q4('v',EAC[cc])}, {q4('a',W2+16*cc+4*s)}, {q4('v',lo)}, {q4('v',EAC[cc])}")
    A(f"  v_cvt_f32_u32 v2, v2")
    for cc in range(2):
        for j in range(2):
            A(f"  v_lshlrev_b32 v{D[0]+4*cc+2*j}, 16, v{B2+2*cc+j}")
            A(f"  v_and_b32 v{D[0]+4*cc+2*j+1}, s40, v{B2+2*cc+j}")
    for i in range(8): A(f"  v_mul_f32 v{D[0]+i}, v{D[0]+i}, v2")
    A(f"  s_mov_b32 s42, 0xbf317218")
    A(f"  v_add_u32 v3, s{sN0}, v30")
    A(f"  v_lshlrev_b32 v3, 7, v3")
    A(f"  v_lshl_add_u32 v3, v17, 3, v3")
    A(f"  s_and_b32 s43, s{sWV}, 1")
    A(f"  s_lshl_b32 s43, s43, 6")
    A(f"  v_cmp_gt_u32 vcc, s{sNN}, v30")
    A(f"  s_mov_b64 exec, vcc")
    for i in range(8): A(f"  v_fma_f32 v{D[0]+i}, v{18+i}, s42, v{D[0]+i}")
    for cc in range(2):
        for j in range(2): A(f"  v_cvt_pk_bf16_f32 v{T+2*cc+j}, v{D[0]+4*cc+2*j}, v{D[0]+4*cc+2*j+1}")
        A(f"  buffer_store_dwordx2 {v2(T+2*cc)}, v3, s[{sOUT}:{sOUT+3}], s43 offen offset:{32*cc}")
    A(f"  v_mul_f32 v2, 0, v18")
    for i in range(1,8): A(f"  v_fma_f32 v2, v{18+i}, 0, v2")
    A(f"  v_cmp_u_f32 vcc, v2, v2")
    A(f"  v_mov_b32 v2, 1")
    A(f"  s_mov_b64 exec, vcc")
    A(f"  ds_write_b32 v31, v2")
    A(f"  s_mov_b64 exec, -1")
    A("M_EPD:")
    ts(E,'epi')
    A(f"  s_cmp_lg_u32 s{sMORE}, 0")
    A(f"  s_cbranch_scc1 M_NEXT")
    A(f"  s_cmp_lg_u32 s{sMODE}, 0")
    A(f"  s_cbranch_scc1 M_EXIT")
    A("  s_waitcnt lgkmcnt(0)")
    A("  s_barrier")
    A(f"  ds_read_b32 v2, v31")
    A("  s_waitcnt lgkmcnt(0)")
    A(f"  v_readfirstlane_b32 s40, v2")
    A(f"  s_cmp_lg_u32 s40, 0")
    if not EXP&4095: A(f"  s_cbranch_scc1 M_RESTART")
    ts(E,'end')
    ts_store(E, 0x600000, f"s{sWV}")
    A("M_EXIT:")
    A("  s_endpgm")
    A("M_SLOW:")
    A("  s_waitcnt lgkmcnt(0)")
    A("  s_barrier")
    A("M_RESTART:")
    A(f"  s_mov_b32 s{sCAP}, {CAPS}")
    A(f"  s_mov_b32 s{sMODE}, 1")
    A(f"  s_mov_b32 s{sRB}, 0")
    A(f"  v_lshlrev_b32 v3, 4, v0")
    for i in range(4): A(f"  v_mov_b32 v{T+i}, 0")
    fill(E, S_, 41*RS, T)
    fill(E, DEG, 256, T)
    A("  s_branch M_HEAD")
    A("M_FOLD:")
    A(f"  s_bitcmp1_b32 s{sWV}, 0")
    A(f"  s_cbranch_scc1 M_NEXT")
    A(f"  v_cmp_gt_u32 vcc, 40, v30")
    A("  s_waitcnt lgkmcnt(0)")
    A(f"  s_mov_b64 exec, vcc")
    for s in range(4):
        A(f"  ds_write_b128 v3, {q4('v',D[0]+8*s)} offset:{128*s}")
        A(f"  ds_write_b128 v3, {q4('v',D[0]+8*s+4)} offset:{128*s+16}")
    A(f"  s_mov_b64 exec, -1")
    A("M_NEXT:")
    A("  s_waitcnt lgkmcnt(0)")
    A("  s_barrier")
    A(f"  s_add_u32 s{sRB}, s{sRB}, s{sCAP}")
    A("M_HEAD:")
    round_head(E,False)
    A("  s_waitcnt lgkmcnt(0)")
    A("  s_barrier")
    A("  s_branch M_BDONE")
    L+=fix(E)
    return L
```

```python
from asmlib import *
WS_REC=0; WS_OFF=0x500000; WS_W1A=0x580000; WS_W1B=0x584000; WS_W2=0x588000; WS_CST=0x58C000; WS_B1=0x58C400; WS_B2=0x58C600; WS_SIZE=0x700000
OFS_RS=1152
LOG2E_BITS=0x3FB8AA3B
def srd(L, d, b, size):
    L += [f"  s_mov_b32 s{d}, s{b}", f"  s_mov_b32 s{d+1}, s{b+1}", f"  s_mov_b32 s{d+2}, {size}", f"  s_mov_b32 s{d+3}, 0x00020000"]
def scan64(L, v, op='v_add_u32_dpp'):
    for sh in (1,2,4,8):
        L.append(f"  {op} v{v}, v{v}, v{v} row_shr:{sh} row_mask:0xf bank_mask:0xf bound_ctrl:0")
    L.append(f"  {op} v{v}, v{v}, v{v} row_bcast:15 row_mask:0xa bank_mask:0xf")
    L.append(f"  {op} v{v}, v{v}, v{v} row_bcast:31 row_mask:0xc bank_mask:0xf")
import os
TS=int(os.environ.get('TS','0'))
K1V=int(os.environ.get('K1V','0'))
def ts1(L,i,real=False):
    if not TS: return
    L.append(f"  s_memrealtime s[{84+2*i}:{85+2*i}]" if real else f"  s_memtime s[{84+2*i}:{85+2*i}]")
    L.append("  s_waitcnt lgkmcnt(0)")
def ts1_store(L):
    if not TS: return
    A=L.append
    A("  s_waitcnt vmcnt(0)")
    A("  s_memrealtime s[100:101]")
    A("  v_lshrrev_b32 v2, 6, v0")
    A("  v_readfirstlane_b32 s41, v2")
    A("  s_waitcnt lgkmcnt(0)")
    A(f"  s_lshl_b32 s40, s2, 4")
    A(f"  s_add_u32 s40, s40, s41")
    A(f"  s_lshl_b32 s40, s40, 6")
    A(f"  s_add_u32 s40, s40, 0x680000")
    A("  v_mov_b32 v2, 0")
    A("  s_mov_b64 exec, 1")
    for i in range(9):
        A(f"  v_mov_b32 v3, s{84+2*i}")
        A(f"  buffer_store_dword v3, v2, s[24:27], s40 offen offset:{4*i}")
K1_STAGE=2560
K1_LDS=K1_STAGE+20000
def kernel1():
    L=[]
    A=L.append
    A("part_kernel:")
    A("  s_cmp_ge_u32 s2, 263")
    A("  s_cbranch_scc1 P_EXIT")
    A("  s_cmp_ge_u32 s2, 256")
    A("  s_cbranch_scc1 P_PREP")
    A("  s_load_dwordx4 s[4:7], s[0:1], 8")
    A("  s_load_dwordx2 s[8:9], s[0:1], 24")
    A("  s_load_dwordx2 s[10:11], s[0:1], 80")
    A("  v_lshlrev_b32 v1, 2, v0")
    A("  v_mov_b32 v2, 0")
    A("  ds_write_b32 v1, v2")
    A("  v_lshlrev_b32 v1, 4, v0")
    A("  v_lshlrev_b32 v3, 3, v0")
    A("  s_mul_i32 s3, s2, 10000")
    A("  s_mul_i32 s28, s2, 5000")
    A("  s_mul_i32 s29, s2, 20000")
    A("  s_add_u32 s30, s29, 10000")
    A("  s_mov_b32 s31, 214749")
    A("  s_mov_b32 s32, 0xffff0000")
    A("  v_mov_b32 v2, 1")
    A("  v_cmp_gt_u32 vcc, 625, v0")
    A("  s_and_saveexec_b64 s[34:35], vcc")
    ts1(L,0,True); ts1(L,1)
    A("  s_waitcnt lgkmcnt(0)")
    srd(L,16,8,2560000)
    A("  buffer_load_dwordx4 v[8:11], v1, s[16:19], s3 offen")
    srd(L,12,6,2560000)
    A("  buffer_load_dwordx4 v[4:7], v1, s[12:15], s3 offen")
    srd(L,20,4,1280000)
    A("  buffer_load_dwordx2 v[12:13], v3, s[20:23], s28 offen")
    srd(L,24,10,WS_SIZE)
    if K1V&1:
        A("  s_load_dwordx2 s[44:45], s[0:1], 0")
        A("  s_load_dwordx2 s[46:47], s[0:1], 64")
        A("  s_load_dwordx4 s[48:51], s[0:1], 32")
        A("  s_load_dwordx2 s[52:53], s[0:1], 56")
        A("  v_cmp_gt_u32 vcc, 64, v0")
        A("  s_cbranch_vccz P_NOWARM")
        A("  s_lshr_b32 s36, s2, 3")
        A("  s_and_b32 s36, s36, 7")
        A("  s_mul_i32 s36, s36, 2560")
        A("  v_mul_u32_u24 v41, 20480, v0")
        A("  v_mov_b32 v42, 0")
        A("  s_waitcnt lgkmcnt(0)")
        srd(L,56,44,1280000)
        A("  buffer_load_dword v43, v41, s[56:59], s36 offen")
        srd(L,60,46,1280000)
        A("  buffer_load_dword v43, v41, s[60:63], s36 offen")
        srd(L,64,48,33024)
        A("  buffer_load_dword v43, v41, s[64:67], s36 offen")
        srd(L,68,50,256)
        A("  buffer_load_dword v43, v42, s[68:71], 0 offen")
        srd(L,72,52,128)
        A("  buffer_load_dword v43, v42, s[72:75], 0 offen")
        A(f"  s_mov_b32 s37, {WS_W1A}")
        A("  v_lshlrev_b32 v42, 10, v0")
        A("  buffer_load_dword v43, v42, s[24:27], s37 offen")
        A("  s_branch P_WARMD")
        A("P_NOWARM:")
        for i in range(6): A("  buffer_load_dword v43, v1, s[16:19], s3 offen")
        A("P_WARMD:")
    ts1(L,2)
    A("  s_barrier")
    A(f"  s_waitcnt vmcnt({2+(6 if K1V&1 else 0)})")
    ts1(L,3)
    for i in range(4):
        A(f"  v_mul_u32_u24 v{14+i}, s31, v{8+i}")
    for i in range(4):
        A(f"  v_lshrrev_b32 v{14+i}, 21, v{14+i}")
    for i in range(4):
        A(f"  v_and_b32 v{14+i}, 0x3fc, v{14+i}")
        A(f"  ds_add_rtn_u32 v{18+i}, v{14+i}, v2")
    ts1(L,4)
    A("  s_waitcnt lgkmcnt(0)")
    A("  s_barrier")
    A("  v_cmp_gt_u32 vcc, 64, v0")
    A("  s_cbranch_vccz P_NOSCAN")
    A("  ds_read_b128 v[24:27], v1")
    A("  s_and_b32 s33, s2, 7")
    A("  s_lshl_b32 s33, s33, 7")
    A("  s_lshr_b32 s36, s2, 3")
    A("  s_lshl_b32 s36, s36, 2")
    A("  s_add_u32 s33, s33, s36")
    A(f"  s_add_u32 s33, s33, {WS_OFF}")
    A(f"  v_mul_u32_u24 v41, {4*OFS_RS}, v0")
    A("  s_waitcnt lgkmcnt(0)")
    A("  v_add_u32 v29, v24, v25")
    A("  v_add_u32 v30, v29, v26")
    A("  v_add_u32 v31, v30, v27")
    A("  v_mov_b32 v28, v31")
    scan64(L,28)
    A("  v_sub_u32 v32, v28, v31")
    A("  v_add_u32 v33, v32, v24")
    A("  v_add_u32 v34, v32, v29")
    A("  v_add_u32 v35, v32, v30")
    A(f"  v_mov_b32 v40, {K1_STAGE}")
    for i in range(4):
        A(f"  v_lshl_add_u32 v{36+i}, v{32+i}, 3, v40")
    A("  ds_write_b128 v1, v[36:39] offset:1024")
    for i in range(4):
        A(f"  v_lshl_or_b32 v{32+i}, v{24+i}, 16, v{32+i}")
    A("  s_waitcnt lgkmcnt(0)")
    A("  s_barrier")
    for i in range(4):
        A(f"  buffer_store_dword v{32+i}, v41, s[24:27], s33 offen offset:{OFS_RS*i}")
    for i in range(4):
        A(f"  ds_read_b32 v{14+i}, v{14+i} offset:1024")
    A("  s_waitcnt vmcnt(4)")
    A("  s_branch P_PACK")
    A("P_NOSCAN:")
    A("  s_barrier")
    for i in range(4):
        A(f"  ds_read_b32 v{14+i}, v{14+i} offset:1024")
    A("  s_waitcnt vmcnt(0)")
    A("P_PACK:")
    ts1(L,5)
    A("  v_lshl_or_b32 v4, v12, 16, v4")
    A("  v_and_or_b32 v5, v12, s32, v5")
    A("  v_lshl_or_b32 v6, v13, 16, v6")
    A("  v_and_or_b32 v7, v13, s32, v7")
    for i in range(4):
        A(f"  s_waitcnt lgkmcnt({3-i})")
        A(f"  v_lshl_add_u32 v{14+i}, v{18+i}, 3, v{14+i}")
    for i in range(4):
        A(f"  ds_write2_b32 v{14+i}, v{4+i}, v{8+i} offset0:0 offset1:1")
    A("  s_waitcnt lgkmcnt(0)")
    A("  s_barrier")
    ts1(L,6)
    A(f"  ds_read_b128 v[4:7], v1 offset:{K1_STAGE}")
    A(f"  ds_read_b128 v[8:11], v1 offset:{K1_STAGE+10000}")
    A("  s_waitcnt lgkmcnt(1)")
    A("  buffer_store_dwordx4 v[4:7], v1, s[24:27], s29 offen")
    A("  s_waitcnt lgkmcnt(0)")
    A("  buffer_store_dwordx4 v[8:11], v1, s[24:27], s30 offen")
    ts1(L,7)
    ts1_store(L)
    A("P_EXIT:")
    A("  s_endpgm")
    A("P_CST:")
    A("  s_load_dwordx4 s[4:7], s[0:1], 32")
    A("  s_load_dwordx2 s[8:9], s[0:1], 56")
    A("  s_load_dwordx2 s[10:11], s[0:1], 80")
    A("  v_cmp_gt_u32 vcc, 64, v0")
    A("  s_cbranch_vccz P_EXIT")
    A("  v_and_b32 v1, 31, v0")
    A("  v_lshlrev_b32 v1, 1, v1")
    A("  v_lshlrev_b32 v2, 2, v0")
    A("  s_mov_b32 s31, 0xBFB8AA3B")
    A(f"  s_mov_b32 s30, {128*256}")
    A("  s_waitcnt lgkmcnt(0)")
    srd(L,24,10,WS_SIZE)
    srd(L,12,4,129*256)
    srd(L,16,6,256)
    srd(L,20,8,128)
    for t in range(4): A(f"  buffer_load_ushort v{4+t}, v1, s[12:15], s30 offen offset:{64*t}")
    A("  buffer_load_dword v8, v2, s[16:19], 0 offen")
    A("  buffer_load_dword v10, v2, s[20:23], 0 offen")
    A("  v_cmp_lt_u32 vcc, 31, v0")
    A("  s_waitcnt vmcnt(0)")
    for t in range(4):
        r=4+t
        A(f"  v_lshlrev_b32 v{r}, 16, v{r}")
        A(f"  v_mul_f32 v{r}, s31, v{r}")
        A(f"  v_cvt_pk_bf16_f32 v12, 0, v{r}")
        A(f"  v_sub_f32 v{r}, v{r}, v12")
        A(f"  v_cvt_pk_bf16_f32 v{r}, 0, v{r}")
        A(f"  v_cndmask_b32 v{r}, v12, v{r}, vcc")
    A("  v_and_b32 v9, 0xffff0000, v8")
    A("  v_lshlrev_b32 v8, 16, v8")
    A("  v_mul_f32 v8, s31, v8")
    A("  v_mul_f32 v9, s31, v9")
    A("  v_lshlrev_b32 v1, 4, v0")
    A("  v_lshlrev_b32 v3, 3, v0")
    A(f"  s_mov_b32 s30, {WS_CST}")
    A("  buffer_store_dwordx4 v[4:7], v1, s[24:27], s30 offen")
    A(f"  buffer_store_dwordx2 v[8:9], v3, s[24:27], s30 offen offset:{WS_B1-WS_CST}")
    A(f"  buffer_store_dword v10, v2, s[24:27], s30 offen offset:{WS_B2-WS_CST}")
    A("  s_endpgm")
    A("P_PREP:")
    A("  s_cmp_eq_u32 s2, 262")
    A("  s_cbranch_scc1 P_CST")
    A("  s_load_dwordx2 s[4:5], s[0:1], 32")
    A("  s_load_dwordx2 s[6:7], s[0:1], 48")
    A("  s_load_dwordx2 s[10:11], s[0:1], 80")
    A("  v_cmp_gt_u32 vcc, 512, v0")
    A("  s_cbranch_vccz P_EXIT")
    A("  s_sub_u32 s3, s2, 256")
    A("  s_and_b32 s28, s3, 1")
    A("  s_lshl_b32 s28, s28, 9")
    A("  v_add_u32 v1, s28, v0")
    A("  s_lshr_b32 s29, s3, 1")
    A("  s_lshl_b32 s30, s29, 14")
    A(f"  s_add_u32 s30, s30, {WS_W1A}")
    A("  s_mov_b32 s31, 1.0")
    A("  s_cmp_eq_u32 s29, 0")
    A(f"  s_cselect_b32 s31, 0xBFB8AA3B, s31")
    A("  s_waitcnt lgkmcnt(0)")
    srd(L,24,10,WS_SIZE)
    srd(L,12,4,129*256)
    srd(L,16,6,128*128)
    A("  s_cmp_eq_u32 s29, 2")
    A("  s_cbranch_scc1 P_PREP2")
    A("  s_cmp_eq_u32 s29, 0")
    A("  s_cbranch_scc1 P_PREP0")
    A("  v_bfe_u32 v2, v1, 4, 2")
    A("  v_bfe_u32 v3, v1, 6, 1")
    A("  v_lshlrev_b32 v2, 11, v2")
    A("  v_lshl_add_u32 v2, v3, 13, v2")
    A("  v_lshrrev_b32 v3, 7, v1")
    A("  v_lshl_add_u32 v2, v3, 5, v2")
    A("  v_and_b32 v3, 15, v1")
    A("  s_branch P_PREP1")
    A("P_PREP0:")
    A("  v_bfe_u32 v2, v1, 5, 1")
    A("  v_bfe_u32 v3, v1, 6, 2")
    A("  v_lshlrev_b32 v2, 13, v2")
    A("  v_lshl_add_u32 v2, v3, 11, v2")
    A("  v_lshrrev_b32 v3, 8, v1")
    A("  v_lshl_add_u32 v2, v3, 6, v2")
    A("  v_and_b32 v3, 31, v1")
    A("P_PREP1:")
    A("  v_lshl_add_u32 v2, v3, 1, v2")
    A("  s_lshl_b32 s32, s29, 14")
    for j in range(8):
        A(f"  buffer_load_ushort v{8+j}, v2, s[12:15], s32 offen offset:{256*j}")
    A("  s_branch P_PREP3")
    A("P_PREP2:")
    A("  v_bfe_u32 v2, v1, 4, 2")
    A("  v_bfe_u32 v3, v1, 6, 2")
    A("  v_lshlrev_b32 v2, 10, v2")
    A("  v_lshl_add_u32 v2, v3, 12, v2")
    A("  v_lshrrev_b32 v3, 8, v1")
    A("  v_lshl_add_u32 v2, v3, 5, v2")
    A("  v_and_b32 v3, 15, v1")
    A("  v_lshl_add_u32 v2, v3, 1, v2")
    for j in range(8):
        A(f"  buffer_load_ushort v{8+j}, v2, s[16:19], 0 offen offset:{128*j}")
    A("P_PREP3:")
    A("  v_lshlrev_b32 v1, 4, v1")
    A("  s_waitcnt vmcnt(0)")
    for j in range(8):
        A(f"  v_lshlrev_b32 v{8+j}, 16, v{8+j}")
    for j in range(8):
        A(f"  v_mul_f32 v{8+j}, s31, v{8+j}")
    for j in range(4):
        A(f"  v_cvt_pk_bf16_f32 v{4+j}, v{8+2*j}, v{9+2*j}")
    A("  buffer_store_dwordx4 v[4:7], v1, s[24:27], s30 offen")
    A("  s_endpgm")
    SC=os.environ.get('SC','')
    if SC: L=[l+' '+SC if l.strip().startswith('buffer_store_dwordx4') else l for l in L]
    return fix(L)
```

```python
from asmlib import *
from k1 import *
import os
CAP=28
BD=0; RS=528; S_=BD+41*RS; DEG=S_+72*RS; CAR=DEG+256; OVF=CAR+256; CNT=OVF+16; MORE=CNT+256; GB=MORE+16
CAPS=12
SORT=(GB+256+127)//128*128; LMAX=16; SORTN=32*LMAX*32+128; DESC=SORT+SORTN; DESCN=(LMAX+2)*128; XR=DESC+DESCN; WST=XR+5120; K2_LDS=WST+16384
assert CAPS*32+40<=32*LMAX
assert K2_LDS<=163840
Z0=BD+40*RS
DUMMY=(40*RS)|((40*RS+S_-BD)<<16)
H64=4; XO=5; OH=10; L4=12; P128=13; P32=14; PD=15; CHK=16; N_=18; DN=20; AA=22; R_=24; AB=26; AS=28
DNS=[8,DN]
REC=32; A5=[36,40]; B5=[44,48,52,56]; D=[60,76]; T=92; B2=108; DR=112; CIN=114; DRR=[112,114]; ACC=[116,118,120,122]; NV=124
W=0; X=[64,80]; W2=96; NA=128
sX=4; sWS=8; sW1=12; sOUT=16; sB1=20; sB2=24
sN0=28; sNN=29; sWV=30; sRB=31; sMODE=32; sNT=33; sCNT=34; sMORE=35; s128=36; sTHR=37; sTH=39; sBK=3; sFL=48; sLD=49; sWL=50; sCAP=51
sMK=52
NLOG2E=0xBFB8AA3B
TS=int(os.environ.get('TS','0'))
ALIGN=int(os.environ.get('ALIGN','0'))
EXP=int(os.environ.get('EXP','0'))
PL=[int(x) for x in os.environ.get('PL','5,6,8,19,22,22,22,22,24,27,28,30').split(',')]
PR=[int(x) for x in os.environ.get('PR','7,4,2').split(',')]
MIX=int(os.environ.get('MIX','0'))
MP=[int(x) for x in os.environ.get('MP','1,4,7,10,13').split(',')]
SP=[int(x) for x in os.environ.get('SP','-1').split(',')]
TSP=os.environ.get('TSP','start,bar1,bar2,bar3,loop,done,bar4').split(',')
def ts(L,name,real=False):
    if not TS: return
    if real: i=0
    elif name in TSP: i=1+TSP.index(name)
    else: return
    L.append(f"  s_memrealtime s[{84+2*i}:{85+2*i}]" if real else f"  s_memtime s[{84+2*i}:{85+2*i}]")
    L.append("  s_waitcnt lgkmcnt(0)")
def ts_store(L, base, wvs):
    if not TS: return
    A=L.append
    A("  s_memrealtime s[100:101]")
    A("  s_waitcnt lgkmcnt(0)")
    A(f"  s_lshl_b32 s40, s2, 4")
    A(f"  s_add_u32 s40, s40, {wvs}")
    A(f"  s_lshl_b32 s40, s40, 6")
    A(f"  s_add_u32 s40, s40, {base}")
    A("  v_mov_b32 v2, 0")
    A("  s_mov_b64 exec, 1")
    for i in range(9):
        A(f"  v_mov_b32 v3, s{84+2*i}")
        A(f"  buffer_store_dword v3, v2, s[{sWS}:{sWS+3}], s40 offen offset:{4*i}")
    A(f"  v_mov_b32 v3, s{sNT}")
    A(f"  buffer_store_dword v3, v2, s[{sWS}:{sWS+3}], s40 offen offset:36")
def q4(p,r): return f"{p}[{r}:{r+3}]"
def v2(r): return f"v[{r}:{r+1}]"
def pk(op,d,a,b,c=None):
    f=lambda r: r if isinstance(r,str) else v2(r)
    if c is None: return f"  v_pk_{op}_f32 {f(d)}, {f(a)}, {f(b)}"
    return f"  v_pk_{op}_f32 {f(d)}, {f(a)}, {f(b)}, {f(c)}"
def sdwa_add(d,a,b,w): return f"  v_add_u32_sdwa v{d}, v{a}, v{b} dst_sel:DWORD dst_unused:UNUSED_PAD src0_sel:WORD_{w} src1_sel:DWORD"
class DSQ:
    def __init__(s): s.q=[]; s.blk=None; s.nb=0
    def issue(s,tag): s.q.append((tag,s.blk))
    def begin(s): s.nb+=1; s.blk=s.nb
    def end(s): s.blk=None
    def wait(s,*tags):
        n=None
        for i,(t,b) in enumerate(s.q):
            if t in tags:
                m=sum(1 for (t2,b2) in s.q[i+1:] if b2 is None or b2==b)
                n=m if n is None else min(n,m)
        if n is None: return []
        n=min(n,15)
        keep=[]
        for i,(t,b) in enumerate(s.q):
            m=sum(1 for (t2,b2) in s.q[i+1:] if b2 is None or b2==b)
            if m<n: keep.append((t,b))
        s.q=keep
        return [f"  s_waitcnt lgkmcnt({n})"]
NPK=int(os.environ.get('NPK','0'))
def chain_np(Dc):
    ins=[]
    for h in range(2): ins.append(f"  v_add_f32 v{AA+h}, 1.0, v{T+h}")
    for h in range(2): ins.append(f"  v_fma_f32 v{N_+h}, v{Dc+h}, v{T+2+h}, v{Dc+h}")
    for h in range(2): ins.append(f"  v_fma_f32 v{DN+h}, v{AA+h}, v{T+2+h}, v{AA+h}")
    for h in range(2): ins.append(f"  v_fmac_f32 v{N_+h}, v{Dc+2+h}, v{AA+h}")
    for j in range(2,8):
        for h in range(2): ins.append(f"  v_fmac_f32 v{N_+h}, v{N_+h}, v{T+2*j+h}")
        for h in range(2): ins.append(f"  v_fmac_f32 v{N_+h}, v{Dc+2*j+h}, v{DN+h}")
        for h in range(2): ins.append(f"  v_fmac_f32 v{DN+h}, v{DN+h}, v{T+2*j+h}")
    return ins
def sub4(Dc,T,N_,DN,AA):
    ins=[pk('add',AA,T,"1.0")+" op_sel_hi:[1,0]", pk('fma',N_,Dc,T+2,Dc), pk('fma',DN,AA,T+2,AA), pk('fma',N_,Dc+2,AA,N_)]
    for j in range(2,4):
        ins+=[pk('fma',AA,Dc+2*j,DN,N_), pk('fma',DN,DN,T+2*j,DN), pk('fma',N_,N_,T+2*j,AA)]
    return ins
CH2=int(os.environ.get('CH2','0'))
def chain(Dc,DN=DN):
    if NPK: return chain_np(Dc)
    if CH2:
        a=sub4(Dc,T,N_,DN,AA); b=sub4(Dc+8,T+8,REC,REC+2,8)
        return [x for pr in zip(a,b) for x in pr]+[pk('mul',AA,REC,DN), pk('mul',DN,DN,REC+2), pk('fma',N_,N_,REC+2,AA)]
    ins=[pk('add',AA,T,"1.0")+" op_sel_hi:[1,0]", pk('fma',N_,Dc,T+2,Dc), pk('fma',DN,AA,T+2,AA), pk('fma',N_,Dc+2,AA,N_)]
    for j in range(2,8):
        ins+=[pk('fma',AA,Dc+2*j,DN,N_), pk('fma',DN,DN,T+2*j,DN), pk('fma',N_,N_,T+2*j,AA)]
    return ins
def chain_safe(Dc):
    ins=[]
    for j in range(8): ins.append(pk('add',T+2*j,T+2*j,"1.0")+" op_sel_hi:[1,0]")
    for i in range(16): ins.append(f"  v_rcp_f32 v{T+i}, v{T+i}")
    ins.append(pk('mul',N_,Dc,T))
    for j in range(1,8): ins.append(pk('fma',N_,Dc+2*j,T+2*j,N_))
    return ins
def mfmas(Dn_,tn,pp):
    ms=[f"  v_mfma_f32_32x32x16_bf16 v[{Dn_}:{Dn_+15}], {q4('v',A5[pp])}, {q4('v',B5[tn])}, 0"]
    for s in range(4):
        ms.append(f"  v_mfma_f32_32x32x16_bf16 v[{Dn_}:{Dn_+15}], {q4('a',X[pp]+4*s)}, {q4('a',W+16*tn+4*s)}, v[{Dn_}:{Dn_+15}]")
    return ms
def bd_reads(Q,tt):
    Q.issue(f'b5_{tt}'); Q.issue(f'b5_{tt}')
    return [f"  ds_read_b32 v{B5[tt]+1}, v{AB} offset:{128*tt}", f"  ds_read_b32 v{B5[tt]+2}, v{AB+1} offset:{128*tt}"]
def cin_reads(Q,tt):
    Q.issue('cin'); Q.issue('cin')
    return [f"  ds_read_b32 v{CIN}, v{AS} offset:{128*tt}", f"  ds_read_b32 v{CIN+1}, v{AS+1} offset:{128*tt}"]
def s_writes(Q,tt):
    Q.issue('wr'); Q.issue('wr')
    return [f"  ds_write_b32 v{AS}, v{R_} offset:{128*tt}", f"  ds_write_b32 v{AS+1}, v{R_+1} offset:{128*tt}"]
def xaddr(pp, xo=XO):
    if EXP&4096: return f"  v_mov_b32 v{xo}, v{H64}"
    return f"  v_mad_u32_u16 v{xo}, v{A5[pp]}, s{s128}, v{H64}"
def xld(pp, s, xo=XO): return f"  buffer_load_dwordx4 {q4('a',X[pp]+4*s)}, v{xo}, s[{sX}:{sX+3}], 0 offen offset:{16*s}"
def a5mask(pp):
    return [f"  v_cmp_le_i16 vcc, 0, v{A5[pp]}",
            f"  v_cndmask_b32 v{A5[pp]+1}, 0, v{OH}, vcc", f"  v_cndmask_b32 v{A5[pp]+2}, 0, v{OH+1}, vcc"]
def fin_ops(Q,safe,tt):
    out=[]
    if not safe:
        out.append(pk('add',CHK,CHK,DN))
        out+=Q.wait('cin')
        out.append(pk('fma',R_,N_,R_,CIN))
    else:
        out+=Q.wait('cin')
        out.append(pk('add',R_,N_,CIN))
    return out+s_writes(Q,tt)
def tile(Q,p,safe):
    q=1-p; out=[]
    for t in range(4):
        Dc=D[t&1]; Dn_=D[(t+1)&1]; tn=(t+1)%4; pp=p if t<3 else q
        tprev=(t+3)%4
        tr=[f"  v_exp_f32 v{T+i}, v{Dc+i}" for i in range(16)]
        if not safe: tr+=[f"  v_rcp_f32 v{R_}, v{DN}", f"  v_rcp_f32 v{R_+1}, v{DN+1}"]
        else: tr+=["  s_nop 0","  s_nop 0"]
        ms=mfmas(Dn_,tn,pp)
        side={}
        def at(pos,f): side.setdefault(pos,[]).append(f)
        def rd(tag,txt):
            def f():
                Q.issue(tag); return [txt]
            return f
        at(2,lambda: bd_reads(Q,(t+2)%4))
        at(3,lambda: cin_reads(Q,tprev))
        if t==1:
            at(12,lambda: Q.wait('desc')+[sdwa_add(AB,DR,L4,0), sdwa_add(AB+1,DR+1,L4,0)])
        if t==2:
            at(5,rd('a5',f"  ds_read_b32 v{A5[p]}, v{P32} offset:{(2+p)*32}"))
        if t==3:
            m=a5mask(p)
            at(6,lambda: Q.wait('a5')+[xaddr(p),m[0]])
            at(8,lambda: [xld(p,s_) for s_ in range(4)]+[m[1],m[2]])
        if t==3 and p==1:
            at(5,lambda: [f"  v_add_u32 v{P32}, 64, v{P32}", f"  v_add_u32 v{PD}, 256, v{PD}"])
        k=0
        for i,x in enumerate(tr):
            if k<5 and i==1+3*k:
                if k==0: out+=Q.wait(f'b5_{tn}')
                if k==1 and t==3: out.append('  s_waitcnt vmcnt(0)')
                out.append(ms[k]); k+=1
            for f in side.get(i,[]): out+=f()
            out.append(x)
        out+=fin_ops(Q,safe,tprev)
        if t==0:
            out+=[sdwa_add(AS,DR,L4,1), sdwa_add(AS+1,DR+1,L4,1)]
            Q.issue('desc'); out.append(f"  ds_read_b64 {v2(DR)}, v{PD} offset:{(1+p)*128}")
        out+= chain_safe(Dc) if safe else chain(Dc)
    return out
OOL=[]
def flush(Q,dr):
    out=[sdwa_add(AS,dr,L4,1), sdwa_add(AS+1,dr+1,L4,1)]
    for t in range(4):
        Q.issue('wr'); Q.issue('wr')
        out+=[f"  ds_write_b32 v{AS}, v{ACC[t]} offset:{128*t}", f"  ds_write_b32 v{AS+1}, v{ACC[t]+1} offset:{128*t}", pk('fma',CHK,ACC[t],"0",CHK)+" op_sel_hi:[1,0,1]"]
    return out
def w2_loads():
    out=[f"  v_lshlrev_b32 v{AS}, 4, v1", f"  v_lshrrev_b32 v{AS+1}, 4, v1", f"  s_and_b32 s40, s{sWV}, 1", f"  v_lshlrev_b32 v{AS+1}, 3, v{AS+1}",
         f"  s_lshl_b32 s45, s40, 6", f"  s_add_u32 s45, s45, {WS_B2}", f"  s_lshl_b32 s40, s40, 13", f"  s_add_u32 s40, s40, {WS_W2}", f"  s_add_u32 s41, s40, 4096"]
    for cc in range(2):
        for s in range(4): out.append(f"  buffer_load_dwordx4 {q4('a',W2+16*cc+4*s)}, v{AS}, s[{sWS}:{sWS+3}], s{40+cc} offen offset:{1024*s}")
    for cc in range(2): out.append(f"  buffer_load_dwordx2 {v2(B2+2*cc)}, v{AS+1}, s[{sWS}:{sWS+3}], s45 offen offset:{32*cc}")
    out.append(f"  s_mov_b32 s{sLD}, 1")
    return out
def ftile(Q,p,ool):
    q=1-p; out=[]
    for t in range(4):
        Dc=D[t&1]; Dn_=D[(t+1)&1]; tn=(t+1)%4; pp=p if t<3 else q
        tprev=(t+3)%4
        tr=[f"  v_exp_f32 v{T+i}, v{Dc+i}" for i in range(16)]
        dp=DNS[(t+1)&1]
        tr+=[f"  v_rcp_f32 v{R_}, v{dp}", f"  v_rcp_f32 v{R_+1}, v{dp+1}"]
        ms=mfmas(Dn_,tn,pp)
        side={}
        def at(pos,f): side.setdefault(pos,[]).append(f)
        def rd(tag,txt):
            def f():
                Q.issue(tag); return [txt]
            return f
        if t==0:
            if p==1:
                at(12,lambda: [f"  s_cmp_eq_u32 s{sLD}, 0"])
                at(14,lambda: [f"  s_cbranch_scc1 M_W2", "M_W2R:"])
                ool+=["M_W2:"]+w2_loads()+["  s_branch M_W2R"]
            at(15,lambda: [f"  s_bitcmp1_b32 s{sFL}, 0"])
        if t==1 and PR[0]:
            at(3,lambda: [f"  s_cmp_eq_u32 s{sCNT}, s{sTHR}"])
            at(5,lambda: [f"  s_cbranch_scc1 M_PR_{p}", f"M_PRR_{p}:"])
            ool+=[f"M_PR_{p}:", "  s_setprio 0", f"  s_cmp_eq_u32 s{sTHR}, {PR[2]}", f"  s_cbranch_scc1 M_PRR_{p}",
                  "  s_setprio 1", f"  s_cmp_eq_u32 s{sTHR}, {PR[1]}", f"  s_mov_b32 s{sTHR}, {PR[2]}", f"  s_cbranch_scc1 M_PRR_{p}",
                  "  s_setprio 2", f"  s_mov_b32 s{sTHR}, {PR[1]}", f"  s_branch M_PRR_{p}"]
        if t==2:
            def c1():
                w=Q.wait('desc')
                Q.begin()
                b=[f"M_C1_{p}:", sdwa_add(AB,DRR[q],L4,0), sdwa_add(AB+1,DRR[q]+1,L4,0)]
                for tt in range(4): b+=bd_reads(Q,tt)
                Q.end()
                ool.extend(b+[f"  s_branch M_C1R_{p}"])
                return w+[f"  s_cbranch_scc1 M_C1_{p}", f"M_C1R_{p}:"]
            at(MP[0],lambda: [f"  s_bitcmp1_b32 s{sFL}, 1"])
            at(MP[0]+1,c1)
            at(PL[0],rd('a5',f"  ds_read_b32 v{A5[p]}, v{P32} offset:{(2+p)*32}"))
            at(PL[1],lambda: [f"  s_lshr_b32 s{sFL}, s{sFL}, 1"])
            at(PL[1]+1,lambda: [f"  s_sub_u32 s{sCNT}, s{sCNT}, 1"])
            if p==1:
                at(PL[2],lambda: [f"  v_add_u32 v{P32}, 64, v{P32}"])
                at(PL[2]+1,lambda: [f"  v_add_u32 v{PD}, 256, v{PD}"])
        if t==3:
            m=a5mask(p)
            at(PL[3],lambda: Q.wait('a5')+[xaddr(p)])
            for s_ in range(4): at(PL[4+s_],(lambda s_: lambda: [xld(p,s_)])(s_))
            at(PL[8],lambda: [m[0]]); at(PL[9],lambda: [m[1]]); at(PL[10],lambda: [m[2]])
            at(PL[11],lambda: [f"  s_cmp_eq_u32 s{sCNT}, 0"])
        ch=chain(Dc,DNS[t&1])
        if t&1: tr+=[ch[0], pk('fma',ACC[tprev],N_,R_,ACC[tprev]), None]+ch[1:]
        else: tr+=[pk('fma',CHK,DNS[0],DNS[1],CHK), pk('fma',ACC[tprev],N_,R_,ACC[tprev])]+ch
        if MIX:
            ex=tr[0:16]; rc=tr[16:18]; fa=tr[19]; ck=None if t&1 else tr[18]
            if MIX==1:
                tr=rc+ex[0:2]+[fa,ck]+ex[2:4]+[ch[0],ex[4],ch[1],ch[2],ex[5],ch[3]]
                for j in range(2,8):
                    c3=ch[4+3*(j-2):7+3*(j-2)]
                    tr+= [c3[0],ex[2*j+2],c3[1],ex[2*j+3],c3[2]] if j<7 else c3
            else:
                tr=rc+ex[0:2]+[fa,ck]+ex[2:8]+[ch[0],ex[8],ch[1],ch[2],ex[9],ch[3]]
                for j in range(2,8):
                    c3=ch[4+3*(j-2):7+3*(j-2)]
                    tr+= [c3[0],ex[2*j+6],c3[1],ex[2*j+7],c3[2]] if j<5 else c3
            assert len(tr)==42
        if SP[0]>=0:
            at(SP[0],lambda: [f"  s_setprio {SP[2]}"])
            at(SP[1],lambda: [f"  s_setprio {SP[3]}"])
        if t==0:
            def c2():
                Q.begin()
                b=[f"M_C2_{p}:", f"  v_cmp_eq_u32 vcc, v{DRR[q]}, v{DRR[p]}", f"  v_cmp_eq_u32_e64 s[40:41], v{DRR[q]+1}, v{DRR[p]+1}"]+flush(Q,DRR[q])
                Q.end()
                for tt in range(4):
                    b+=[f"  v_cndmask_b32 v{ACC[tt]}, 0, v{ACC[tt]}, vcc", f"  v_cndmask_b32_e64 v{ACC[tt]+1}, 0, v{ACC[tt]+1}, s[40:41]"]
                ool.extend(b+[f"  s_branch M_C2R_{p}"])
                return [f"  s_cbranch_scc1 M_C2_{p}", f"M_C2R_{p}:"]
            at(20,c2)
            at(22,rd('desc',f"  ds_read_b64 {v2(DRR[q])}, v{PD} offset:{(1+p)*128}"))
        k=0
        for i,x in enumerate(tr):
            if k<5 and i==MP[k]:
                if k==0: out+=Q.wait(f'b5_{tn}')
                if k==1 and t==3: out.append('  s_waitcnt vmcnt(0)')
                out.append(ms[k]); k+=1
            for f in side.get(i,[]): out+=f()
            if x: out.append(x)
    return out
def ffinish(p):
    Q=DSQ()
    return [f"  v_rcp_f32 v{R_}, v{DN}", f"  v_rcp_f32 v{R_+1}, v{DN+1}", pk('fma',CHK,DNS[0],DNS[1],CHK), pk('fma',ACC[3],N_,R_,ACC[3])]+flush(Q,DRR[p])
def fastloop():
    Q=DSQ()
    ftile(Q,0,[]); ftile(Q,1,[])
    ool=[]
    b0=ftile(Q,0,ool); b1=ftile(Q,1,ool)
    L=b0+["  s_cbranch_scc1 M_FFIN0"]+b1+["  s_cbranch_scc0 M_LOOPF"]
    if EXP&2: L=[l for l in L if not l.strip().startswith(('ds_','s_waitcnt'))]
    if EXP&4: L=[l for l in L if not l.strip().startswith(('buffer_','s_waitcnt vm','s_mov_b32 m0','s_add_u32 m0'))]
    if EXP&8: L=[l for l in L if not l.strip().startswith(('v_mad','v_add_u32','v_cmp','v_cnd'))]
    if EXP&512: L=[l for l in L if not l.strip().startswith(('s_cbranch_scc1 M_C1'))]
    if EXP&1024: L=[l for l in L if not l.strip().startswith(('s_cbranch_scc1 M_C2'))]
    if EXP&2048: L=[l for l in L if not l.strip().startswith(('s_bitcmp','s_cbranch_scc1 M_W2','s_cmp_eq_u32 s49','s_lshr'))]
    L=fix(L)
    if ALIGN==1: L=align8(L)
    fix(L+L, check_only=True, name='loopF')
    return [".p2align 6","M_LOOPF:"]+L+fix(ffinish(1))+["  s_branch M_DONE","M_FFIN0:"]+fix(ffinish(0))+["  s_branch M_DONE"]+fix(ool)
def finish(safe):
    Q=DSQ()
    out=cin_reads(Q,3)
    if not safe: out+=[f"  v_rcp_f32 v{R_}, v{DN}", f"  v_rcp_f32 v{R_+1}, v{DN+1}"]
    return out+fin_ops(Q,safe,3)
def isize(l):
    c=Ins(l)
    if c.kind=='none': return 0
    if c.kind in('mfma','ds','vmem'): return 8
    lit=any(re.match(r'^(0x[0-9a-f]+|\d+)$',o) and (int(o,0)>64) for o in c.ops)
    if c.kind=='salu':
        if c.mn.startswith(('s_waitcnt','s_nop','s_cbranch','s_branch')): return 4
        return 8 if lit else 4
    if c.mn.startswith(('v_pk_','v_mad_','v_fma')) or c.mn.endswith(('_e64','_sdwa')): return 8
    return 8 if lit else 4
def align8(L):
    out=[]; off=0
    for l in L:
        n=isize(l)
        if n==8 and off%8==4:
            done=False
            for i in range(len(out)-1,-1,-1):
                if isize(out[i])==8: break
                c=Ins(out[i])
                if c.kind=='valu':
                    out[i]=out[i].replace(c.mn,c.mn+'_e64',1); done=True; break
            if not done: out.append("  s_nop 0")
            off+=4
        out.append(l); off+=n
    return out
def mainloop(safe):
    tag='S' if safe else 'F'
    Q=DSQ()
    tile(Q,0,safe); tile(Q,1,safe)
    b0=tile(Q,0,safe); b1=tile(Q,1,safe)
    L=b0+[f"  s_sub_u32 s{sCNT}, s{sCNT}, 1", f"  s_cmp_eq_u32 s{sCNT}, 0", f"  s_cbranch_scc1 M_FIN{tag}"]
    L+=b1+[f"  s_sub_u32 s{sCNT}, s{sCNT}, 1", f"  s_cmp_lg_u32 s{sCNT}, 0", f"  s_cbranch_scc1 M_LOOP{tag}"]
    if EXP&2: L=[l for l in L if not l.strip().startswith(('ds_','s_waitcnt'))]
    if EXP&4: L=[l for l in L if not l.strip().startswith(('buffer_','s_waitcnt vm','s_mov_b32 m0','s_add_u32 m0'))]
    if EXP&16: L=[l for l in L if not (l.strip().startswith(('ds_read_b32','ds_write_b32')) and f', v{P32} ' not in l)]
    if EXP&32: L=[l for l in L if not l.strip().startswith(('ds_read_b128 a'))]
    if EXP&64: L=[l for l in L if not l.strip().startswith(('s_waitcnt lgkm'))]
    if EXP&128: L=[l for l in L if not l.strip().startswith(('ds_write_b32'))]
    if EXP&256: L=[l for l in L if 'sdwa' not in l]
    if EXP&8: L=[l for l in L if not l.strip().startswith(('v_mad','v_add_u32','v_cmp','v_cnd'))]
    L=fix(L)
    if ALIGN==1: L=align8(L)
    if ALIGN==2: L=align8([re.sub(r'v_exp_f32 ','v_exp_f32_e64 ',l) for l in L])
    fix(L+L, check_only=True, name='loop'+tag)
    L=[".p2align 6", f"M_LOOP{tag}:"]+L+[f"M_FIN{tag}:"]+fix(finish(safe))+["  s_branch M_DONE"]
    return L
def fill(L, base, nbytes, quad, tmp=2):
    n=nbytes//16; full=n//512; rem=n%512
    L.append(f"  v_add_u32 v{tmp}, {base}, v3")
    for i in range(full): L.append(f"  ds_write_b128 v{tmp}, {q4('v',quad)} offset:{8192*i}")
    if rem:
        L.append(f"  v_cmp_gt_u32 vcc, {rem}, v0")
        L.append(f"  s_mov_b64 exec, vcc")
        L.append(f"  ds_write_b128 v{tmp}, {q4('v',quad)} offset:{8192*full}")
        L.append(f"  s_mov_b64 exec, -1")
RC=D[0]; RK=T; OFS=20; REM=20; VOF=26
def round_head(L, first):
    A=L.append
    A(f"  v_lshrrev_b32 v2, 3, v0")
    A(f"  v_lshlrev_b32 v30, 4, v2")
    A(f"  s_mul_i32 s40, s{sBK}, {OFS_RS}")
    A(f"  s_add_u32 s40, s40, {WS_OFF}")
    A(f"  buffer_load_dwordx4 {q4('v',OFS)}, v30, s[{sWS}:{sWS+3}], s40 offen")
    if first:
        A(f"  v_lshrrev_b32 v17, 5, v1")
        A(f"  v_lshlrev_b32 v{H64}, 6, v17")
        A(f"  v_lshrrev_b32 v31, 3, v1")
        A(f"  v_and_b32 v{XO}, 7, v1")
        A(f"  v_xor_b32 v{XO}, v{XO}, v31")
        A(f"  v_lshlrev_b32 v{XO}, 4, v{XO}")
        A(f"  v_lshl_add_u32 v{XO}, v31, 7, v{XO}")
        A(f"  s_lshl_b32 s45, s{sWV}, 10")
        A(f"  s_add_u32 m0, s45, {XR}")
        A(f"  s_lshl_b32 s44, s{sN0}, 7")
        A(f"  s_add_u32 s45, s45, s44")
        A(f"  s_lshl_b32 s44, s{sWV}, 11")
        A(f"  s_add_u32 s44, s44, {WST}")
        A(f"  s_cmp_lt_u32 s{sWV}, 5")
        A(f"  s_cselect_b32 s45, s45, 0x40000000")
        A(f"  s_cselect_b32 m0, m0, s44")
        A(f"  v_add_u32 v{XO}, s45, v{XO}")
        A(f"  v_lshlrev_b32 v{XO+1}, 4, v1")
        A(f"  buffer_load_dwordx4 v{XO}, s[{sX}:{sX+3}], 0 offen lds")
        A(f"  s_lshl_b32 s44, s{sWV}, 11")
        A(f"  s_add_u32 s44, s44, {WS_W1B}")
        A(f"  v_and_b32 v31, 15, v1")
        A(f"  v_lshlrev_b32 v31, 2, v31")
        A(f"  s_lshl_b32 s45, s{sWV}, 6")
        A(f"  s_add_u32 s45, s45, {WS_B1}")
        for s_ in range(2): A(f"  buffer_load_dwordx4 {q4('a',X[1]+4*s_)}, v{XO+1}, s[{sWS}:{sWS+3}], s44 offen offset:{1024*s_}")
        A(f"  buffer_load_dword v{ACC[0]}, v31, s[{sWS}:{sWS+3}], s45 offen")
        A(f"  s_mov_b32 s44, {WS_CST}")
        A(f"  buffer_load_dwordx4 {q4('v',B2)}, v{XO+1}, s[{sWS}:{sWS+3}], s44 offen")
        ts(L,'iss1')
    A(f"  v_lshlrev_b32 v3, 4, v0")
    for i in range(4): A(f"  v_mov_b32 v{T+i}, 0")
    for i in range(4): A(f"  v_mov_b32 v{T+4+i}, 0x8000")
    for i in range(4): A(f"  v_mov_b32 v{T+8+i}, {DUMMY}")
    fill(L, SORT, SORTN, T+4)
    if first: fill(L, Z0, GB-Z0, T)
    else:
        fill(L, S_+41*RS, 31*RS, T)
        fill(L, CNT, GB-CNT, T)
    fill(L, DESC, DESCN, T+8)
    if first: ts(L,'fill')
    A(f"  v_bfe_u32 v2, v0, 3, 3")
    A(f"  v_lshlrev_b32 v2, 5, v2")
    A(f"  v_add_u32 v2, s{sWV}, v2")
    A(f"  v_mul_u32_u24 v30, 20000, v2")
    A(f"  v_and_b32 v2, 7, v0")
    A(f"  v_lshl_add_u32 v30, v2, 4, v30")
    A(f"  v_lshlrev_b32 v2, 1, v2")
    A(f"  v_sub_u32 v31, s{sCAP}, v2")
    A(f"  v_add_u32 v2, s{sRB}, v2")
    A(f"  s_lshl_b32 s40, s{sRB}, 3")
    A(f"  v_mov_b32 v{CIN}, 0")
    for j in range(4):
        if j==0: A(f"  s_waitcnt vmcnt({5 if first else 0})")
        A(f"  v_and_b32 v{VOF+j}, 0xffff, v{OFS+j}")
        A(f"  v_lshrrev_b32 v{REM+j}, 16, v{OFS+j}")
        A(f"  v_lshl_add_u32 v{VOF+j}, v{VOF+j}, 3, v30")
        A(f"  v_sub_u32 v{REM+j}, v{REM+j}, v2")
        A(f"  v_max_i32 v{CIN}, v{CIN}, v{REM+j}")
        A(f"  v_min_i32 v{REM+j}, v{REM+j}, v31")
        for u in range(2):
            for i in range(2):
                k=sMK+2*(4*j+2*u+i)
                A(f"  v_cmp_lt_i32_e64 s[{k}:{k+1}], {16*u+i}, v{REM+j}")
    if first: ts(L,'offs')
    A(f"  v_mov_b32 v2, 0x40000000")
    for j in range(4):
        for u in range(2):
            k=sMK+2*(4*j+2*u)
            A(f"  v_cndmask_b32_e64 v{30+u}, v2, v{VOF+j}, s[{k}:{k+1}]")
            A(f"  buffer_load_dwordx4 {q4('v',RC+8*j+4*u)}, v{30+u}, s[{sWS}:{sWS+3}], s40 offen offset:{128*u}")
        if j<3: A(f"  s_add_u32 s40, s40, {8*20000}")
    if first:
        A(f"  s_lshl_b32 s40, s{sWV}, 11")
        A(f"  s_add_u32 s44, s40, {WST}")
        A(f"  s_add_u32 s40, s40, {WS_W1A}")
        A(f"  s_mov_b32 m0, s44")
        for j in range(2): A(f"  buffer_load_dwordx4 v{XO+1}, s[{sWS}:{sWS+3}], s40 offen offset:{1024*j} lds")
        ts(L,'iss2')
        A(f"  v_and_b32 v3, 1, v1")
        A(f"  v_bfe_u32 v30, v1, 2, 1")
        A(f"  v_lshl_or_b32 v30, v30, 1, v3")
        A(f"  v_lshlrev_b32 v31, 1, v17")
        A(f"  v_mov_b32 v{REC+2}, 0x3f803f80")
        A(f"  v_cmp_eq_u32 vcc, v30, v31")
        A(f"  v_cndmask_b32 v{OH}, 0, v{REC+2}, vcc")
        A(f"  v_add_u32 v31, 1, v31")
        A(f"  v_cmp_eq_u32 vcc, v30, v31")
        A(f"  v_cndmask_b32 v{OH+1}, 0, v{REC+2}, vcc")
        A(f"  s_waitcnt vmcnt(10)")
        for t in range(4):
            A(f"  v_mov_b32 v{B5[t]}, v{B2+t}")
            A(f"  v_mov_b32 v{B5[t]+3}, 0")
        ts(L,'bin')
    else:
        A(f"  s_waitcnt vmcnt(0)")
def kernel2():
    L=[]; A=L.append
    A("main_kernel:")
    A("  s_cmp_ge_u32 s2, 256")
    A("  s_cbranch_scc1 M_EXIT")
    A("  s_load_dwordx2 s[52:53], s[0:1], 80")
    A("  s_load_dwordx2 s[54:55], s[0:1], 0")
    A("  s_load_dwordx2 s[46:47], s[0:1], 64")
    A("  v_and_b32 v1, 63, v0")
    A("  v_lshrrev_b32 v2, 6, v0")
    A(f"  v_readfirstlane_b32 s{sWV}, v2")
    A(f"  s_and_b32 s{sBK}, s2, 7")
    A(f"  s_lshl_b32 s{sBK}, s{sBK}, 5")
    A(f"  s_lshr_b32 s{sN0}, s2, 3")
    A(f"  s_or_b32 s{sBK}, s{sBK}, s{sN0}")
    A(f"  s_mul_i32 s{sN0}, s{sBK}, 625")
    A(f"  s_add_u32 s{sNN}, s{sN0}, 640")
    A(f"  s_add_u32 s{sN0}, s{sN0}, 15")
    A(f"  s_lshr_b32 s{sN0}, s{sN0}, 4")
    A(f"  s_lshr_b32 s{sNN}, s{sNN}, 4")
    A(f"  s_sub_u32 s{sNN}, s{sNN}, s{sN0}")
    A(f"  s_mov_b32 s{sRB}, 0")
    A(f"  s_mov_b32 s{sMODE}, 0")
    A(f"  s_mov_b32 s{s128}, 128")
    A(f"  s_mov_b32 s{sLD}, 0")
    A(f"  s_mov_b32 s{sWL}, 0")
    A(f"  s_mov_b32 s{sCAP}, {CAP}")
    A(f"  s_mov_b32 s{sTH}, 0x71800000")
    A(f"  v_and_b32 v2, 31, v1")
    A(f"  v_lshlrev_b32 v{L4}, 2, v2")
    A(f"  v_add_u32 v{L4}, {BD}, v{L4}")
    ts(L,0,True); ts(L,'start')
    A("  s_waitcnt lgkmcnt(0)")
    srd(L,sWS,52,WS_SIZE); srd(L,sX,54,1280000); srd(L,sOUT,46,1280000)
    round_head(L,True)
    A("  s_waitcnt lgkmcnt(0)")
    A("  s_barrier")
    ts(L,'bar1')
    A(f"  v_and_b32 v2, 7, v1")
    A(f"  v_lshrrev_b32 v3, 4, v1")
    A(f"  v_xor_b32 v2, v2, v3")
    A(f"  v_and_b32 v30, 15, v1")
    A(f"  v_lshlrev_b32 v31, 7, v30")
    A(f"  v_add_u32 v31, {XR}, v31")
    A(f"  v_lshl_add_u32 v{REC}, v2, 4, v31")
    A(f"  v_xor_b32 v{REC+1}, 64, v{REC}")
    for rt in range(3):
        for s_ in range(2): A(f"  ds_read_b128 {q4('a',8*rt+4*s_)}, v{REC+s_} offset:{2048*rt}")
    A(f"  s_mov_b32 s46, {NLOG2E}")
    A(f"  s_lshl_b32 s47, s{sWV}, 6")
    A(f"  v_mul_u32_u24 v3, {4*RS}, v3")
    A(f"  v_lshl_add_u32 v30, v30, 2, v3")
    A(f"  v_add_u32 v30, s47, v30")
    for rt in range(3):
        for s_ in range(2):
            c = "0" if s_==0 else q4('v',T+4*rt)
            A(f"  s_waitcnt lgkmcnt({5-2*rt-s_})")
            A(f"  v_mfma_f32_16x16x32_bf16 {q4('v',T+4*rt)}, {q4('a',8*rt+4*s_)}, {q4('a',X[1]+4*s_)}, {c}")
    for r in range(12):
        z=T+r
        if r==8: A(f"  s_mov_b32 exec_hi, 0")
        A(f"  v_fma_f32 v{z}, v{z}, s46, v{ACC[0]}")
        A(f"  v_cvt_pk_bf16_f32 v{REC+(r&1)}, 0, v{z}")
        A(f"  v_sub_f32 v{REC+(r&1)}, v{z}, v{REC+(r&1)}")
        A(f"  v_cvt_pk_bf16_f32 v{z}, v{REC+(r&1)}, v{z}")
        A(f"  ds_write_b32 v30, v{z} offset:{BD+(16*(r>>2)+(r&3))*RS}")
    A(f"  s_mov_b64 exec, -1")
    A("M_BDONE:")
    ts(L,'bdone')
    A(f"  s_lshl_b32 s40, s{sN0}, 2")
    A(f"  s_sub_u32 s40, {CNT}, s40")
    A(f"  v_mov_b32 v2, 1")
    A(f"  v_mov_b32 v31, {MORE}")
    A(f"  v_cmp_lt_i32 vcc, s{sCAP}, v{CIN}")
    A(f"  s_mov_b64 exec, vcc")
    A(f"  ds_write_b32 v31, v2")
    for j in range(4):
        for u in range(2):
            A(f"  s_waitcnt vmcnt({9-(2*j+u)})")
            for i in range(2):
                k=4*j+2*u+i; r=RC+8*j+4*u+2*i
                A(f"  s_mov_b64 exec, s[{sMK+2*k}:{sMK+2*k+1}]")
                A(f"  v_lshl_add_u32 v{r+1}, v{r+1}, 2, s40")
                A(f"  ds_add_rtn_u32 v{RK+k}, v{r+1}, v2")
    A(f"  s_mov_b64 exec, -1")
    ts(L,'cnt')
    A(f"  s_lshl_b32 s41, s{sWV}, 2")
    A(f"  v_bfe_u32 v30, v1, 2, 1")
    A(f"  v_and_b32 v31, 1, v1")
    A(f"  v_lshl_or_b32 v30, v30, 1, v31")
    A(f"  v_add_u32 v{P32}, s41, v30")
    A(f"  v_bfe_u32 v30, v1, 3, 2")
    A(f"  v_bfe_u32 v31, v1, 1, 1")
    A(f"  v_lshl_or_b32 v30, v31, 2, v30")
    A(f"  v_lshlrev_b32 v{DR+1}, 2, v30")
    A(f"  v_add_u32 v{DR+1}, {SORT}, v{DR+1}")
    A(f"  s_lshl_b32 s41, s{sWV}, 4")
    A(f"  s_add_u32 s41, s41, {DESC}")
    A(f"  v_lshrrev_b32 v30, 5, v1")
    A(f"  v_lshl_add_u32 v{PD}, v30, 3, s41")
    A(f"  v_lshlrev_b32 v3, 2, v1")
    A(f"  v_add_u32 v3, {CNT}, v3")
    A("  s_waitcnt lgkmcnt(0)")
    A("  s_barrier")
    ts(L,'bar2')
    A(f"  ds_read_b32 v17, v3")
    A(f"  v_mov_b32 v31, {MORE}")
    A(f"  ds_read_b32 v31, v31")
    A("  s_waitcnt lgkmcnt(1)")
    A(f"  v_add_u32 v30, 7, v17")
    A(f"  v_lshrrev_b32 v30, 3, v30")
    A(f"  v_mov_b32 v2, v30")
    scan64(L,2)
    A(f"  v_readlane_b32 s{sNT}, v2, 63")
    A(f"  v_sub_u32 v2, v2, v30")
    A(f"  v_mov_b32 v{REC}, {SORT}")
    A(f"  v_lshl_add_u32 v{REC}, v2, 5, v{REC}")
    A(f"  ds_write_b32 v3, v{REC} offset:{GB-CNT}")
    A(f"  s_add_u32 s{sNT}, s{sNT}, 31")
    A(f"  s_lshr_b32 s{sNT}, s{sNT}, 5")
    A(f"  s_max_u32 s42, s{sNT}, 1")
    A(f"  v_cvt_f32_u32 v{REC+3}, s42")
    A(f"  v_rcp_f32 v{REC+3}, v{REC+3}")
    A("  s_waitcnt lgkmcnt(0)")
    A(f"  v_readfirstlane_b32 s{sMORE}, v31")
    A(f"  s_cmp_gt_u32 s{sNT}, {LMAX}")
    A(f"  s_cselect_b32 s42, 1, s{sMORE}")
    A(f"  s_andn2_b32 s42, s42, s{sMODE}")
    A(f"  s_cbranch_scc1 M_SLOW")
    for k in range(16):
        r=RC+2*k
        A(f"  s_mov_b64 exec, s[{sMK+2*k}:{sMK+2*k+1}]")
        A(f"  ds_read_b32 v{r+1}, v{r+1} offset:{GB-CNT}")
    A(f"  s_mov_b64 exec, -1")
    A(f"  v_mul_f32 v{REC+3}, 0x47800000, v{REC+3}")
    A(f"  v_cvt_u32_f32 v{REC+3}, v{REC+3}")
    A(f"  v_add_u32 v{REC+3}, 1, v{REC+3}")
    A(f"  s_lshl_b32 s43, s{sNT}, 5")
    A(f"  v_mad_u32_u24 v{P32}, v{P32}, s43, v{DR+1}")
    A(f"  v_mul_u32_u24 v{AB}, v2, v{REC+3}")
    A(f"  v_lshrrev_b32 v{AB}, 16, v{AB}")
    A(f"  v_add3_u32 v{AB+1}, v2, v30, -1")
    A(f"  v_mul_u32_u24 v{AB+1}, v{AB+1}, v{REC+3}")
    A(f"  v_lshrrev_b32 v{AB+1}, 16, v{AB+1}")
    A(f"  v_add_u32 v{DR}, v2, v30")
    A(f"  s_sub_u32 s44, 0, s{sNT}")
    A(f"  v_mad_i32_i24 v{DR}, v{AB+1}, s44, v{DR}")
    A(f"  v_lshrrev_b32 v{DR+1}, 2, v{AB+1}")
    A(f"  v_cmp_eq_u32_e64 s[44:45], s{sWV}, v{DR+1}")
    A(f"  v_cmp_lt_u32 vcc, 0, v30")
    A(f"  v_lshlrev_b32_e64 v{DR}, v{DR}, 1")
    A(f"  s_and_b64 s[44:45], s[44:45], vcc")
    A(f"  v_sub_u32 v{AB+1}, v{AB+1}, v{AB}")
    A(f"  v_cndmask_b32_e64 v{CIN}, 0, v{DR}, s[44:45]")
    scan64(L,CIN,'v_or_b32_dpp')
    A(f"  v_readlane_b32 s{sFL}, v{CIN}, 63")
    A(f"  v_mul_u32_u24 v{REC+1}, {RS}, v1")
    A(f"  v_add_u32 v{REC}, s{sWV}, v2")
    A(f"  v_cndmask_b32 v{AB+1}, 0, v{AB+1}, vcc")
    A(f"  v_lshl_or_b32 v{AB+1}, v{AB+1}, 8, v{AB}")
    A(f"  v_subrev_u32 v30, s{sWV}, v30")
    A(f"  s_lshl_b32 s44, s{sNT}, 7")
    A(f"  s_sub_u32 s44, 4, s44")
    A(f"  s_mov_b32 s45, {RS}")
    A(f"  v_mov_b32 v{AS}, {40*RS+S_-BD}")
    A(f"  v_add_u32 v{AS+1}, {S_-BD}, v{REC+1}")
    ts(L,'desc')
    A("M_DESC:")
    A(f"  v_cmp_lt_i32 vcc, 0, v30")
    A(f"  s_cbranch_vccz M_DESCD")
    A(f"  s_mov_b64 exec, vcc")
    A(f"  v_mul_u32_u24 v{REC+2}, v{REC}, v{REC+3}")
    A(f"  v_lshrrev_b32 v{REC+2}, 16, v{REC+2}")
    A(f"  v_lshlrev_b32 v{DR}, 7, v{REC}")
    A(f"  v_mad_i32_i24 v{DR}, v{REC+2}, s44, v{DR}")
    A(f"  v_cmp_eq_u32 vcc, v{REC+2}, v{AB}")
    A(f"  v_mad_u32_u24 v{DR+1}, v{REC+2}, s45, v{AS}")
    A(f"  v_add_u32 v{DR}, {DESC}, v{DR}")
    A(f"  v_cndmask_b32 v{DR+1}, v{DR+1}, v{AS+1}, vcc")
    A(f"  v_lshl_or_b32 v{DR+1}, v{DR+1}, 16, v{REC+1}")
    A(f"  ds_write_b32 v{DR}, v{DR+1}")
    A(f"  v_add_u32 v{REC}, 8, v{REC}")
    A(f"  v_add_u32 v30, -8, v30")
    A(f"  s_branch M_DESC")
    A("M_DESCD:")
    A(f"  s_mov_b64 exec, -1")
    A(f"  s_cmp_lg_u32 s{sWV}, 0")
    A(f"  s_cbranch_scc1 M_NODEG")
    A(f"  v_add_u32 v3, {DEG-CNT}, v3")
    A(f"  ds_add_u32 v3, v17")
    A(f"  ds_write_b32 v3, v{AB+1} offset:{CAR-DEG}")
    A("M_NODEG:")
    ts(L,'descd')
    A("  s_waitcnt lgkmcnt(0)")
    for k in range(16):
        r=RC+2*k
        A(f"  s_mov_b64 exec, s[{sMK+2*k}:{sMK+2*k+1}]")
        A(f"  v_lshl_add_u32 v{r+1}, v{RK+k}, 2, v{r+1}")
        A(f"  ds_write_b32 v{r+1}, v{r}")
    A(f"  s_mov_b64 exec, -1")
    A(f"  s_mov_b32 s{sCNT}, s{sNT}")
    if EXP&1:
        A(f"  s_cmp_ge_u32 s{sWV}, 4")
        A(f"  s_cselect_b32 s{sCNT}, 0, s{sCNT}")
    A(f"  v_mov_b32 v{CHK}, 0")
    A(f"  v_mov_b32 v{CHK+1}, 0")
    A(f"  v_mov_b32 v{N_}, 0")
    A(f"  v_mov_b32 v{N_+1}, 0")
    A(f"  v_mov_b32 v{DN}, 1.0")
    A(f"  v_mov_b32 v{DN+1}, 1.0")
    A(f"  v_mov_b32 v{DNS[0]}, 1.0")
    A(f"  v_mov_b32 v{DNS[0]+1}, 1.0")
    A(f"  v_add_u32 v{AS}, {40*RS+S_-BD}, v{L4}")
    A(f"  v_add_u32 v{AS+1}, {40*RS+S_-BD}, v{L4}")
    A(f"  v_mov_b32 v{A5[0]+3}, 0")
    A(f"  v_mov_b32 v{A5[1]+3}, 0")
    for t in range(4):
        A(f"  v_mov_b32 v{ACC[t]}, 0")
        A(f"  v_mov_b32 v{ACC[t]+1}, 0")
    A(f"  v_lshlrev_b32 v30, 4, v1")
    A(f"  v_add_u32 v30, {WST}, v30")
    A("  s_waitcnt vmcnt(0) lgkmcnt(0)")
    A("  s_barrier")
    if PR[0]:
        A("  s_setprio 3")
        A(f"  s_mov_b32 s{sTHR}, {PR[0]}")
    ts(L,'bar3')
    A(f"  ds_read_b32 v{A5[0]}, v{P32}")
    A(f"  ds_read_b32 v{A5[1]}, v{P32} offset:32")
    A(f"  ds_read_b64 {v2(DR)}, v{PD}")
    A("  s_waitcnt lgkmcnt(2)")
    A(xaddr(0))
    for s_ in range(4): A(xld(0,s_))
    A("  s_waitcnt lgkmcnt(0)")
    A(xaddr(1,XO+1))
    L+=[sdwa_add(AB,DR,L4,0), sdwa_add(AB+1,DR+1,L4,0)]
    L+=a5mask(0)+a5mask(1)
    Q=DSQ()
    for tt in range(4): L+=bd_reads(Q,tt)
    A(f"  s_cmp_lg_u32 s{sWL}, 0")
    A(f"  s_cbranch_scc1 M_NOW")
    for i in range(16):
        A(f"  ds_read_b128 {q4('a',W+4*i)}, v30 offset:{i*1024}")
    A(f"  s_mov_b32 s{sWL}, 1")
    A("M_NOW:")
    A(f"  s_cmp_eq_u32 s{sCNT}, 0")
    A(f"  s_cbranch_scc1 M_DONE")
    A("  s_waitcnt vmcnt(0) lgkmcnt(0)")
    for s_ in range(4): A(xld(1,s_,XO+1))
    L+=mfmas(D[0],0,0)
    ts(L,'loop')
    A("  s_nop 7"); A("  s_nop 3")
    A(f"  s_cmp_lg_u32 s{sMODE}, 0")
    A(f"  s_cbranch_scc1 M_LOOPS")
    L=fix(L)
    L+=fastloop()
    L+=mainloop(True)
    E=[]; A=E.append
    A("M_DONE:")
    A(f"  s_cmp_lg_u32 s{sLD}, 0")
    A(f"  s_cbranch_scc1 M_DONE2")
    E+=w2_loads()
    A("M_DONE2:")
    A(f"  v_add_f32 v{CHK}, v{CHK}, v{CHK+1}")
    A(f"  v_mov_b32 v2, 1")
    A(f"  v_mov_b32 v31, {OVF}")
    A(f"  v_cmp_ngt_f32 vcc, s{sTH}, v{CHK}")
    A(f"  s_mov_b64 exec, vcc")
    A(f"  ds_write_b32 v31, v2")
    A(f"  s_mov_b64 exec, -1")
    A(f"  v_and_b32 v30, 15, v1")
    A(f"  s_lshr_b32 s41, s{sWV}, 1")
    A(f"  s_lshl_b32 s41, s41, 4")
    A(f"  v_add_u32 v30, s41, v30")
    A(f"  v_lshlrev_b32 v2, 2, v30")
    A(f"  v_add_u32 v2, {DEG}, v2")
    A(f"  ds_read_b32 v{DR}, v2 offset:{CAR-DEG}")
    A(f"  ds_read_b32 v2, v2")
    A(f"  v_lshrrev_b32 v17, 4, v1")
    A(f"  v_lshlrev_b32 v{CIN}, 5, v17")
    A(f"  v_add_u32 v{CIN}, {S_}, v{CIN}")
    A(f"  s_mov_b32 s45, {RS}")
    A(f"  v_mad_u32_u24 v3, v30, s45, v{CIN}")
    A(f"  v_add_u32 v{CIN}, {40*RS}, v{CIN}")
    A("  s_waitcnt lgkmcnt(0)")
    A(f"  v_and_b32 v{AB}, 0xff, v{DR}")
    A(f"  v_lshrrev_b32 v{DR}, 8, v{DR}")
    A(f"  v_mad_u32_u24 v{AB}, v{AB}, s45, v{CIN}")
    A(f"  v_add_u32 v{AB}, {RS}, v{AB}")
    A(f"  v_cmp_lt_i32 vcc, 0, v{DR}")
    A(f"  v_cndmask_b32 v{AB+1}, v{CIN}, v{AB}, vcc")
    A("  s_waitcnt vmcnt(0)")
    ts(E,'done')
    A("  s_barrier")
    ts(E,'bar4')
    A(f"  ds_read_b32 v31, v31")
    A(f"  s_cmp_ge_u32 s{sWV}, 6")
    A(f"  s_cbranch_scc1 M_EPD")
    for s in range(4):
        A(f"  ds_read_b128 {q4('v',D[0]+8*s)}, v3 offset:{128*s}")
        A(f"  ds_read_b128 {q4('v',D[0]+8*s+4)}, v3 offset:{128*s+16}")
    A("M_CARRY:")
    CB=[T,T+8,A5[0],ACC[0]]
    for s in range(4):
        A(f"  ds_read_b128 {q4('v',CB[s])}, v{AB+1} offset:{128*s}")
        A(f"  ds_read_b128 {q4('v',CB[s]+4)}, v{AB+1} offset:{128*s+16}")
    A(f"  v_add_u32 v{AB}, {RS}, v{AB}")
    A(f"  v_add_u32 v{DR}, -1, v{DR}")
    A(f"  v_cmp_lt_i32 vcc, 0, v{DR}")
    A(f"  v_cndmask_b32 v{AB+1}, v{CIN}, v{AB}, vcc")
    for i in range(16):
        if i%2==0: A(f"  s_waitcnt lgkmcnt({7-i//2})")
        A(pk('add',D[0]+2*i,D[0]+2*i,CB[i//4]+2*(i%4)))
    A(f"  s_cbranch_vccnz M_CARRY")
    A(f"  v_readfirstlane_b32 s40, v31")
    A(f"  s_andn2_b32 s40, s40, s{sMODE}")
    A(f"  s_cbranch_scc1 M_RESTART")
    ts(E,'carry')
    A(f"  s_cmp_lg_u32 s{sMORE}, 0")
    A(f"  s_cbranch_scc1 M_FOLD")
    A(f"  s_mov_b32 s40, 0xffff0000")
    A("  s_waitcnt lgkmcnt(0)")
    EAC=[18,22]
    for s in range(4):
        b=D[0]+8*s; hi=T+8*(s&1); lo=hi+4
        for j in range(4): A(f"  v_cvt_pk_bf16_f32 v{hi+j}, v{b+2*j}, v{b+2*j+1}")
        for cc in range(2):
            c="0" if s==0 else q4('v',EAC[cc])
            A(f"  v_mfma_f32_16x16x32_bf16 {q4('v',EAC[cc])}, {q4('a',W2+16*cc+4*s)}, {q4('v',hi)}, {c}")
        for j in range(4):
            A(f"  v_lshlrev_b32 v{REC}, 16, v{hi+j}")
            A(f"  v_and_b32 v{REC+1}, s40, v{hi+j}")
            A(f"  v_sub_f32 v{b+2*j}, v{b+2*j}, v{REC}")
            A(f"  v_sub_f32 v{b+2*j+1}, v{b+2*j+1}, v{REC+1}")
        for j in range(4): A(f"  v_cvt_pk_bf16_f32 v{lo+j}, v{b+2*j}, v{b+2*j+1}")
        for cc in range(2):
            A(f"  v_mfma_f32_16x16x32_bf16 {q4('v',EAC[cc])}, {q4('a',W2+16*cc+4*s)}, {q4('v',lo)}, {q4('v',EAC[cc])}")
    A(f"  v_cvt_f32_u32 v2, v2")
    for cc in range(2):
        for j in range(2):
            A(f"  v_lshlrev_b32 v{D[0]+4*cc+2*j}, 16, v{B2+2*cc+j}")
            A(f"  v_and_b32 v{D[0]+4*cc+2*j+1}, s40, v{B2+2*cc+j}")
    for i in range(8): A(f"  v_mul_f32 v{D[0]+i}, v{D[0]+i}, v2")
    A(f"  s_mov_b32 s42, 0xbf317218")
    A(f"  v_add_u32 v3, s{sN0}, v30")
    A(f"  v_lshlrev_b32 v3, 7, v3")
    A(f"  v_lshl_add_u32 v3, v17, 3, v3")
    A(f"  s_and_b32 s43, s{sWV}, 1")
    A(f"  s_lshl_b32 s43, s43, 6")
    A(f"  v_cmp_gt_u32 vcc, s{sNN}, v30")
    A(f"  s_mov_b64 exec, vcc")
    for i in range(8): A(f"  v_fma_f32 v{D[0]+i}, v{18+i}, s42, v{D[0]+i}")
    for cc in range(2):
        for j in range(2): A(f"  v_cvt_pk_bf16_f32 v{T+2*cc+j}, v{D[0]+4*cc+2*j}, v{D[0]+4*cc+2*j+1}")
        A(f"  buffer_store_dwordx2 {v2(T+2*cc)}, v3, s[{sOUT}:{sOUT+3}], s43 offen offset:{32*cc}")
    ts(E,'epi')
    A("M_END:")
    ts(E,'end')
    ts_store(E, 0x600000, f"s{sWV}")
    A("M_EXIT:")
    A("  s_endpgm")
    A("M_EPD:")
    A("  s_waitcnt lgkmcnt(0)")
    A(f"  v_readfirstlane_b32 s40, v31")
    A(f"  s_andn2_b32 s40, s40, s{sMODE}")
    A(f"  s_cbranch_scc1 M_RESTART")
    A(f"  s_cmp_lg_u32 s{sMORE}, 0")
    A(f"  s_cbranch_scc1 M_NEXT")
    A(f"  s_branch M_END")
    A("M_RESTART:")
    A("M_SLOW:")
    A("  s_waitcnt lgkmcnt(0)")
    A("  s_barrier")
    A(f"  s_mov_b32 s{sCAP}, {CAPS}")
    A(f"  s_mov_b32 s{sMODE}, 1")
    A(f"  s_mov_b32 s{sRB}, 0")
    A(f"  v_lshlrev_b32 v3, 4, v0")
    for i in range(4): A(f"  v_mov_b32 v{T+i}, 0")
    fill(E, S_, 41*RS, T)
    fill(E, DEG, 256, T)
    A("  s_branch M_HEAD")
    A("M_FOLD:")
    A(f"  s_bitcmp1_b32 s{sWV}, 0")
    A(f"  s_cbranch_scc1 M_NEXT")
    A(f"  v_cmp_gt_u32 vcc, 40, v30")
    A("  s_waitcnt lgkmcnt(0)")
    A(f"  s_mov_b64 exec, vcc")
    for s in range(4):
        A(f"  ds_write_b128 v3, {q4('v',D[0]+8*s)} offset:{128*s}")
        A(f"  ds_write_b128 v3, {q4('v',D[0]+8*s+4)} offset:{128*s+16}")
    A(f"  s_mov_b64 exec, -1")
    A("M_NEXT:")
    A("  s_waitcnt lgkmcnt(0)")
    A("  s_barrier")
    A(f"  s_add_u32 s{sRB}, s{sRB}, s{sCAP}")
    A("M_HEAD:")
    round_head(E,False)
    A("  s_waitcnt lgkmcnt(0)")
    A("  s_barrier")
    A("  s_branch M_BDONE")
    L+=fix(E)
    return L
```
